```python
import torch

def _softmax(x, axis=-1):
    return torch.softmax(x, dim=axis)
def _gelu(x):
    return torch.nn.functional.gelu(x, approximate="tanh")
def _silu(x):
    return torch.nn.functional.silu(x)
def _sigmoid(x):
    return torch.sigmoid(x)
def _layernorm(x, axis=-1, eps=1e-5):
    m = x.mean(dim=axis, keepdim=True)
    v = x.var(dim=axis, keepdim=True, unbiased=False)
    return (x - m) / torch.sqrt(v + eps)
def _scatter_add(tgt, idx, src, axis=0):
    return tgt.clone().index_add_(axis, idx, src)
def _segment_sum(src, seg, n):
    out = torch.zeros((n,) + src.shape[1:], dtype=src.dtype)
    return out.index_add_(0, seg, src)
def _pad(x, pw):
    flat = tuple(v for pair in reversed(pw) for v in pair)
    return torch.nn.functional.pad(x, flat)

kernel_name = 'parallel_sum__ssm_conv_s4__dense_activation_squared_relu__prompt'

def setup_inputs():

    _w = (lambda a: (lambda t: t.to(torch.bfloat16) if t.is_floating_point() else t)(torch.as_tensor(a)))
    def _A_setup():
        B, L, D, N = 1, 2048, 512, 128
        A_re = -(lambda _x: torch.exp(torch.as_tensor(_x)))((lambda *s: torch.randn(*s, dtype=torch.bfloat16) * 3.2)(D, N))
        A_im = torch.pi * (lambda *s: torch.randn(*s, dtype=torch.bfloat16) * 0.2)(D, N)
        B_re = (lambda *s: torch.randn(*s, dtype=torch.bfloat16) * 0.4)(D, N)
        B_im = (lambda *s: torch.randn(*s, dtype=torch.bfloat16) * 0.4)(D, N)
        C_re = (lambda *s: torch.randn(*s, dtype=torch.bfloat16) * 0.4)(D, N)
        C_im = (lambda *s: torch.randn(*s, dtype=torch.bfloat16) * 0.4)(D, N)
        log_dt = (lambda *s: torch.randn(*s, dtype=torch.bfloat16) * 0.2)(D) * 0.5 - 4.0
        Dskip = (lambda *s: torch.randn(*s, dtype=torch.bfloat16) * 0.4)(D)
        return {
            "u": _w((lambda *s: torch.randn(*s, dtype=torch.bfloat16) * 0.05)(B, L, D)),
            "A_re": _w(A_re),
            "A_im": _w(A_im),
            "B_re": _w(B_re),
            "B_im": _w(B_im),
            "C_re": _w(C_re),
            "C_im": _w(C_im),
            "log_dt": _w(log_dt),
            "Dskip": _w(Dskip),
        }
    _A_in = _A_setup()

    def _B_setup():
        B, S, D, F = 1, 2048, 512, 1792
        return {
            "x": _w((lambda *s: torch.randn(*s, dtype=torch.bfloat16) * 0.05)(B, S, D)),
            "w1": _w((lambda *s: torch.randn(*s, dtype=torch.bfloat16) * 0.05)(D, F)),
            "b1": _w((lambda *s: torch.randn(*s, dtype=torch.bfloat16) * 0.2)(F)),
            "w2": _w((lambda *s: torch.randn(*s, dtype=torch.bfloat16) * 0.05)(F, D)),
            "b2": _w((lambda *s: torch.randn(*s, dtype=torch.bfloat16) * 0.8)(D)),
        }
    _B_in = _B_setup()

    return {
        "A_u": _A_in["u"],
        "A_A_re": _A_in["A_re"],
        "A_A_im": _A_in["A_im"],
        "A_B_re": _A_in["B_re"],
        "A_B_im": _A_in["B_im"],
        "A_C_re": _A_in["C_re"],
        "A_C_im": _A_in["C_im"],
        "A_log_dt": _A_in["log_dt"],
        "A_Dskip": _A_in["Dskip"],
        "B_x": _B_in["x"],
        "B_w1": _B_in["w1"],
        "B_b1": _B_in["b1"],
        "B_w2": _B_in["w2"],
        "B_b2": _B_in["b2"],
    }

def reference(A_u, A_A_re, A_A_im, A_B_re, A_B_im, A_C_re, A_C_im, A_log_dt, A_Dskip, B_x, B_w1, B_b1, B_w2, B_b2):
    def _A_ref(u, A_re, A_im, B_re, B_im, C_re, C_im, log_dt, Dskip):
        Bsz, L, D = u.shape
        dt = torch.exp(log_dt)[:, None]
        A = A_re + 1j * A_im
        Bc = B_re + 1j * B_im
        Cc = C_re + 1j * C_im
        logdA = dt * A
        dB = dt * Bc
        l = (lambda x, dt: x.to(dt))(torch.arange(L), A_re.dtype)
        P = torch.exp(logdA[:, :, None] * l[None, None, :])
        K = torch.einsum("dn,dnl,dn->dl", Cc, P, dB).real
        L2 = 2 * L
        Kp = _pad(K, ((0, 0), (0, L)))
        up = (lambda x, *d: x.permute(*d))(u, 0, 2, 1)
        up = _pad(up, ((0, 0), (0, 0), (0, L)))
        Kf = (lambda x, axes=(-2,-1): torch.fft.rfft2(x.float(), dim=axes))(Kp[:, None, :], axes=(-2, -1))
        Uf = (lambda x, axes=(-2,-1): torch.fft.rfft2(x.float(), dim=axes))(up[:, :, None, :], axes=(-2, -1))
        Yf = Uf * Kf[None, :, :, :]
        y = (lambda x, s, axes=(-2,-1): torch.fft.irfft2(x, s=s, dim=axes).to(torch.bfloat16))(Yf, (1, L2), axes=(-2, -1))[:, :, 0, :L]
        y = (lambda x, *d: x.permute(*d))(y, 0, 2, 1) + u * Dskip[None, None, :]
        return y

    def _B_ref(x, w1, b1, w2, b2):
        h = torch.einsum("bsd,df->bsf", x, w1) + b1
        zero = torch.zeros_like(h)
        r = torch.where(h > zero, h, zero)
        h = r * r
        out = torch.einsum("bsf,fd->bsd", h, w2) + b2
        return out

    x = A_u
    xn = _layernorm(x, axis=-1)
    return x + _A_ref(xn, A_A_re, A_A_im, A_B_re, A_B_im, A_C_re, A_C_im, A_log_dt, A_Dskip) + _B_ref(xn, B_w1, B_b1, B_w2, B_b2)
```

```python
import re, subprocess, os, tempfile

REG_RE = re.compile(r'(?<![\w.])(-?\|?)([vas])(?:(\d+)|\[(\d+):(\d+)\])(?![\w])')
TRANS = ('v_exp_f32','v_log_f32','v_rcp_f32','v_rsq_f32','v_sqrt_f32','v_sin_f32','v_cos_f32')

def regs_of(op):
    out = set()
    for m in REG_RE.finditer(op):
        k = m.group(2)
        if m.group(3) is not None:
            out.add((k, int(m.group(3))))
        else:
            for i in range(int(m.group(4)), int(m.group(5)) + 1):
                out.add((k, i))
    if re.search(r'\bvcc\b', op): out.add(('s', 'vcc'))
    if re.search(r'\bexec\b', op): out.add(('s', 'exec'))
    if re.search(r'\bm0\b', op): out.add(('s', 'm0'))
    return out

class Ins:
    def __init__(self, text):
        self.text = text
        t = text.split(';')[0].strip()
        parts = t.split(None, 1)
        self.op = parts[0]
        rest = parts[1] if len(parts) > 1 else ''
        ops = [o.strip() for o in re.split(r',(?![^\[]*\])', rest)] if rest else []
        self.ops = ops
        op = self.op
        base = re.sub(r'_(e32|e64|dpp|sdwa)$', '', op)
        self.base = base
        self.kind = 'other'
        d, u = set(), set()
        self.srcA = self.srcB = self.srcC = set()
        self.store_data = set()
        if op.startswith('v_mfma'):
            self.kind = 'mfma'
            d = regs_of(ops[0]); self.srcA = regs_of(ops[1]); self.srcB = regs_of(ops[2]); self.srcC = regs_of(ops[3])
            u = self.srcA | self.srcB | self.srcC
            self.passes = 8 if '32x32' in op else 4
        elif op.startswith('v_'):
            self.kind = 'valu'
            nd = 1
            if base in ('v_add_co_u32','v_addc_co_u32','v_sub_co_u32','v_mad_u64_u32'): nd = 2
            for o in ops[:nd]: d |= regs_of(o)
            for o in ops[nd:]: u |= regs_of(o)
            if base.startswith('v_permlane') and 'swap' in base:
                d |= regs_of(ops[1]); u |= regs_of(ops[0])
            if base in ('v_fmac_f32','v_dot2c_f32_bf16','v_writelane_b32') or op.endswith('_dpp'): u |= regs_of(ops[0])
            if base.startswith('v_cmpx'): d.add(('s','exec'))
        elif op.startswith(('buffer_','global_')):
            self.kind = 'vmem'
            lds = bool(re.search(r'\blds\b', rest)) or '_lds_' in op
            if op in ('buffer_wbl2','buffer_inv'):
                pass
            elif 'store' in op or 'atomic' in op:
                for o in ops: u |= regs_of(o)
                di = 0 if op.startswith('buffer_') else 1
                if 'atomic' in op and re.search(r'\bsc0\b', rest): d |= regs_of(ops[0])
                if 'x4' in op or 'x3' in op: self.store_data = regs_of(ops[di])
            elif lds:
                for o in ops: u |= regs_of(o)
                u.add(('s','m0')); self.dma = True
            else:
                d |= regs_of(ops[0])
                for o in ops[1:]: u |= regs_of(o)
                if 'd16' in op: u |= regs_of(ops[0])
        elif op.startswith('ds_'):
            self.kind = 'ds'
            if 'write' in op or op.startswith('ds_add'):
                for o in ops: u |= regs_of(o)
            else:
                d |= regs_of(ops[0])
                for o in ops[1:]: u |= regs_of(o)
        elif op.startswith('s_'):
            self.kind = 'salu'
            if op.startswith(('s_load','s_memtime','s_memrealtime')): self.kind = 'smem'
            if not op.startswith(('s_cmp','s_waitcnt','s_barrier','s_nop','s_branch','s_cbranch','s_endpgm','s_sleep','s_setprio','s_bitcmp')):
                if ops: d |= regs_of(ops[0])
                for o in ops[1:]: u |= regs_of(o)
                if 'saveexec' in op: d.add(('s','exec'))
            else:
                for o in ops: u |= regs_of(o)
        self.d, self.u = d, u
        self.states = 1
        if op == 's_nop': self.states = int(ops[0]) + 1

def need(p, c):
    n = 0
    vec = lambda s: {r for r in s if r[0] in 'va'}
    sg = lambda s: {r for r in s if r[0] == 's'}
    if p.kind == 'valu':
        if c.kind == 'mfma' and vec(p.d) & c.u: n = max(n, 2)
        if c.kind == 'mfma' and ('s','exec') in p.d: n = max(n, 4)
        if c.kind == 'vmem' and sg(p.d) & c.u: n = max(n, 5)
        if c.kind == 'valu':
            if p.base in TRANS and c.base not in TRANS and p.d & c.u: n = max(n, 1)
            if p.base in TRANS and c.base in TRANS and p.d & c.u: n = max(n, 1)
            if sg(p.d) & c.u: n = max(n, 4 if c.base in ('v_readlane_b32','v_writelane_b32') else 2)
            if (c.op.endswith('_dpp') or c.base.startswith('v_permlane')) and vec(p.d) & c.u: n = max(n, 2)
            if c.base in ('v_readlane_b32','v_readfirstlane_b32') and vec(p.d) & c.u: n = max(n, 1)
            if ('s','exec') in p.d: n = max(n, 5)
        if c.kind == 'salu' and sg(p.d) & c.u: n = max(n, 2)
        if c.kind in ('vmem','ds') and p.base in TRANS and p.d & c.u: n = max(n, 1)
    if p.kind == 'salu':
        if ('s','m0') in p.d and c.kind == 'vmem' and ('s','m0') in c.u: n = max(n, 1)
        if ('s','exec') in p.d and c.kind == 'valu' and (c.op.endswith('_dpp') or c.base.startswith('v_permlane')): n = max(n, 1)
    if p.kind == 'mfma':
        P = {4: (6, 8, 3), 8: (10, 12, 7)}[p.passes]
        if c.kind == 'mfma':
            if p.d & (c.srcA | c.srcB): n = max(n, P[1])
            if p.d & c.srcC and not (p.d == c.srcC and p.passes == c.passes and p.op == c.op): n = max(n, P[0])
            if p.d & c.d and not (p.d & c.srcC): n = max(n, P[1])
        elif c.kind in ('valu','vmem','ds'):
            if p.d & (c.u | c.d): n = max(n, P[1])
            if c.kind == 'valu' and p.srcC & c.d: n = max(n, P[2])
    if p.kind == 'vmem' and p.store_data and c.kind in ('valu','mfma','ds','vmem') and p.store_data & c.d: n = max(n, 2)
    return n

class Asm:
    def __init__(self):
        self.out = []
        self.hist = []
        self.vm = []
        self.lg = []
        self.nlab = 0
    def raw(self, s): self.out.append(s)
    def label(self, name):
        self.out.append(name + ':')
    def newlabel(self, p='L'):
        self.nlab += 1
        return '%s_%d' % (p, self.nlab)
    def __call__(self, text, tag=None):
        for line in text.split('\n'):
            line = line.strip()
            if not line or line.startswith(';'): continue
            if line.endswith(':'):
                self.out.append(line); continue
            ins = Ins(line)
            dist = 0; req = 0
            for p in reversed(self.hist):
                r = need(p, ins) - dist
                if r > req: req = r
                dist += p.states
                if dist > 20: break
            while req > 0:
                k = min(req, 16)
                self.out.append('    s_nop %d' % (k - 1)); self.hist.append(Ins('s_nop %d' % (k - 1))); req -= k
            self.out.append('    ' + line); self.hist.append(ins)
            if len(self.hist) > 40: self.hist = self.hist[-30:]
            if ins.kind == 'vmem': self.vm.append(tag)
            elif ins.kind == 'ds': self.lg.append(tag)
            elif ins.kind == 'smem': self.lg.append('SMEM')
    def _cnt(self, lst, tags):
        if not isinstance(tags, (list, tuple, set)) or isinstance(tags, tuple): tags = [tags]
        last = -1
        for i, t in enumerate(lst):
            if t in tags: last = i
        return last
    def wait(self, vm=None, lg=None):
        parts = []
        if vm is not None:
            last = len(self.vm) - 1 if vm == 'all' else self._cnt(self.vm, vm)
            if last >= 0:
                n = len(self.vm) - 1 - last
                n = min(n, 63)
                parts.append('vmcnt(%d)' % n); self.vm = self.vm[len(self.vm) - n:] if n else []
        if lg is not None:
            last = len(self.lg) - 1 if (lg == 'all' or 'SMEM' in self.lg) else self._cnt(self.lg, lg)
            if last >= 0:
                n = len(self.lg) - 1 - last
                n = min(n, 15)
                parts.append('lgkmcnt(%d)' % n); self.lg = self.lg[len(self.lg) - n:] if n else []
        if parts: self('s_waitcnt ' + ' '.join(parts))
    def drain(self):
        self('s_waitcnt vmcnt(0) lgkmcnt(0)'); self.vm = []; self.lg = []
    def pad(self, n=20):
        self('s_nop 7\ns_nop 7\ns_nop 3')
    def text(self): return '\n'.join(self.out) + '\n'

def vr(b, n=1, k='v'):
    return '%s%d' % (k, b) if n == 1 else '%s[%d:%d]' % (k, b, b + n - 1)
def ar(b, n=1): return vr(b, n, 'a')
def sr(b, n=1): return vr(b, n, 's')

class Alloc:
    def __init__(self, lo, hi): self.free = list(range(lo, hi)); self.hi = lo
    def get(self, n=1, al=None):
        al = al or (1 if n == 1 else 2)
        for b in self.free:
            if b % al == 0 and all((b + i) in self.free for i in range(n)):
                for i in range(n): self.free.remove(b + i)
                self.hi = max(self.hi, b + n)
                return b
        raise RuntimeError('out of regs (%d)' % n)
    def put(self, b, n=1):
        for i in range(n):
            assert (b + i) not in self.free
            self.free.append(b + i)
        self.free.sort()

PROMOTE = re.compile(r'^\s*(v_(?:mov_b32|add_u32|sub_u32|subrev_u32|and_b32|or_b32|xor_b32|lshlrev_b32|lshrrev_b32|add_f32|sub_f32|mul_f32|max_f32|min_f32|fmac_f32|exp_f32|sin_f32|cos_f32|fract_f32|rcp_f32|sqrt_f32|mul_u32_u24|cndmask_b32|cmp_\w+?))(_e32)?(\s.*)$')
def align8(text):
    lines = text.split('\n')
    def sizes(lines):
        with tempfile.TemporaryDirectory() as td:
            p = os.path.join(td, 'a.s'); open(p, 'w').write('\n'.join(lines))
            r = subprocess.run(['llvm-mc', '-triple=amdgcn-amd-amdhsa', '-mcpu=gfx950', '-show-encoding', p], capture_output=True, text=True)
            assert r.returncode == 0, r.stderr[:3000]
            return [len(m.group(1).split(',')) for m in re.finditer(r'encoding: \[([^\]]*)\]', r.stdout)]
    sz = sizes(lines)
    isins = lambda l: l.startswith('    ')
    out = []; off = 0; k = 0; cand = None
    for l in lines:
        if l.startswith('.p2align'): off = 0; cand = None
        if not isins(l):
            out.append(l); continue
        s = sz[k]; k += 1
        if s >= 8 and off % 8 == 4:
            if cand is not None:
                m = PROMOTE.match(out[cand]); out[cand] = '    ' + m.group(1) + '_e64' + m.group(3)
            else:
                out.append('    s_nop 0')
            off += 4
        out.append(l); off += s
        if s == 4 and PROMOTE.match(l): cand = len(out) - 1
        elif s >= 8: cand = None
    assert k == len(sz), (k, len(sz))
    return '\n'.join(out)
```

```python
import sys
from asmlib import *
NAME = "parallel_sum__ssm_conv_s4__dense_activation_squared_relu__prompt"
WS_H, WS_XT, WS_YT, WS_FL, WS_ST, WS_SZ = 0, 0x700000, 0x900000, 0xB00000, 0xB80000, 0xC00000
SX, SW1, SW2, SWS, SOUT, SDBG = 4, 8, 12, 16, 20, 24
sW, sXC, sJ = 28, 29, 30
sT0, sT1, sT2, sT3, sT4 = 31, 32, 33, 34, 35
P = lambda i: 36 + 2 * i
sRB, sCB, sA, sB, sC, sD, sE, sF = 70, 71, 72, 73, 74, 75, 76, 77
sPAIR, sRT, sDB = 78, 79, 80
sSTAMP = 82
vTid, vLane, vL15, vG, vR, vC, vL16 = 0, 1, 2, 3, 4, 5, 6
VBASE = 8
L_CT = 131072
L_W2 = 0
L_TAB = 49152
L_KX = L_TAB + 69632
L_XC = L_KX + 9216
L_END = L_XC + 33280
L_RED = L_TAB
LDS_BYTES = 163840
assert L_END <= LDS_BYTES
ONE2 = 0x3F803F80

class G:
    def __init__(self, cfg):
        self.a = Asm(); self.cfg = cfg; self.nst = 0
        self.sc = ' sc1' if cfg.get('fused') else ''
    def stamp(self):
        if self.cfg.get('prof'):
            self.a('s_memrealtime %s' % sr(sSTAMP + 2 * self.nst, 2)); self.nst += 1
    def write_stamps(self, slot):
        if not self.cfg.get('prof'): return
        a = self.a
        a.drain()
        a('s_lshl_b32 s%d, s2, 8\ns_lshl_b32 s%d, s%d, 6\ns_add_u32 s%d, s%d, s%d' % (sT0, sT1, sW, sT0, sT0, sT1))
        a('s_add_u32 s%d, s%d, %d' % (sT0, sT0, WS_ST + slot * 65536))
        a('v_mov_b32 v10, 0')
        for i in range(self.nst):
            a('v_mov_b32 v11, s%d' % (sSTAMP + 2 * i))
            a('buffer_store_dword v11, v10, %s, s%d offen offset:%d' % (sr(SWS, 4), sT0, 4 * i))
        self.nst = 0

    def header(self, kname):
        a = self.a
        a.raw('.globl %s\n.p2align 8\n.type %s,@function\n%s:' % (kname, kname, kname))
        a.hist = []; a.vm = []; a.lg = []
        self.endl = a.newlabel('END')
        a('s_cmp_ge_u32 s2, 256\ns_cbranch_scc1 %s' % self.endl)
        a('s_load_dwordx16 s[36:51], s[0:1], 0\ns_load_dwordx16 s[52:67], s[0:1], 64\ns_load_dwordx2 s[68:69], s[0:1], 128')
        self.stamp()
        a('v_lshrrev_b32 v7, 6, v0\nv_and_b32 v%d, 63, v0\nv_and_b32 v%d, 15, v0' % (vLane, vL15))
        a('v_readfirstlane_b32 s%d, v7' % sW)
        a('v_lshrrev_b32 v%d, 4, v%d\nv_bfe_u32 v%d, v0, 2, 2\nv_and_b32 v%d, 3, v0\nv_lshlrev_b32 v%d, 4, v%d' % (vG, vLane, vR, vC, vL16, vLane))
        a('s_and_b32 s%d, s2, 7\ns_lshr_b32 s%d, s2, 3' % (sXC, sJ))
        a('s_lshl_b32 s%d, s%d, 5\ns_add_u32 s%d, s%d, s%d' % (sPAIR, sXC, sPAIR, sPAIR, sJ))
        a('s_and_b32 s%d, s%d, 3\ns_lshl_b32 s%d, s%d, 2\ns_add_u32 s%d, s%d, s%d\ns_lshr_b32 s%d, s%d, 2' % (sT0, sJ, sRT, sXC, sRT, sRT, sT0, sDB, sJ))
        for srd, n in ((SX, 2097152), (SW1, 1835008), (SW2, 1835008), (SWS, WS_SZ), (SOUT, 2097152), (SDBG, 256)):
            a('s_mov_b32 s%d, 0x%x\ns_mov_b32 s%d, 0x20000' % (srd + 2, n, srd + 3))
        a.wait(lg='all')
        for srd, p in ((SX, 0), (SW1, 10), (SW2, 12), (SWS, 16), (SOUT, 14), (SDBG, 15)):
            a('s_mov_b32 s%d, s%d\ns_and_b32 s%d, s%d, 0xffff' % (srd, P(p), srd + 1, P(p) + 1))
    def footer(self, kname):
        a = self.a
        a.label(self.endl); a('s_endpgm')
    def kd(self, kname):
        return ('.p2align 6\n.amdhsa_kernel %s\n  .amdhsa_next_free_vgpr 512\n  .amdhsa_next_free_sgpr 102\n  .amdhsa_accum_offset 256\n'
                '  .amdhsa_group_segment_fixed_size 0\n  .amdhsa_kernarg_size 136\n  .amdhsa_user_sgpr_count 2\n'
                '  .amdhsa_user_sgpr_kernarg_segment_ptr 1\n  .amdhsa_system_sgpr_workgroup_id_x 1\n.end_amdhsa_kernel\n' % kname)

    def stats(self, S1, S2, m, s, r, t):
        a = self.a
        a('v_mul_f32 v%d, 0x3b000000, v%d' % (m, S1))
        a('v_mul_f32 v%d, v%d, v%d' % (t, m, m))
        a('v_mul_f32 v%d, 0x3b000000, v%d' % (s, S2))
        a('v_sub_f32 v%d, v%d, v%d' % (s, s, t))
        a('v_max_f32 v%d, 0, v%d' % (s, s))
        a('v_cvt_pk_bf16_f32 v%d, v%d, v%d' % (t, m, s))
        a('v_lshlrev_b32 v%d, 16, v%d' % (m, t))
        a('v_and_b32 v%d, 0xffff0000, v%d' % (s, t))
        a('v_add_f32 v%d, 0x3727c5ac, v%d' % (s, s))
        a('v_cvt_pk_bf16_f32 v%d, v%d, v%d' % (s, s, s))
        a('v_lshlrev_b32 v%d, 16, v%d' % (s, s))
        a('v_sqrt_f32 v%d, v%d' % (s, s))
        a('v_cvt_pk_bf16_f32 v%d, v%d, v%d' % (s, s, s))
        a('v_lshlrev_b32 v%d, 16, v%d' % (s, s))
        a('v_rcp_f32 v%d, v%d' % (r, s))

    def phase1(self):
        a = self.a
        lnl, done = a.newlabel('LN'), a.newlabel('P1DONE')
        a('s_cmp_ge_u32 s%d, 28\ns_cbranch_scc1 %s' % (sJ, lnl))
        vm0, lg0, h0, n0 = list(a.vm), list(a.lg), list(a.hist), self.nst
        self.gemm1()
        a('s_branch %s' % done)
        vm1, lg1, n1 = list(a.vm), list(a.lg), self.nst
        a.label(lnl); a.vm, a.lg, a.hist, self.nst = vm0, lg0, h0, n0
        self.lnwg()
        while self.nst < n1: self.stamp()
        assert a.vm == vm1, (a.vm, vm1)
        a.wait(lg='all')
        a.label(done); a.lg = lg1
        a.pad()

    def gemm1(self):
        a = self.a; V = Alloc(VBASE, 256); D = self.cfg.get('D1', 4)
        a('s_and_b32 s%d, s%d, 3\ns_lshl_b32 s%d, s%d, 2\ns_and_b32 s%d, s%d, 3\ns_add_u32 s%d, s%d, s%d' % (sT0, sXC, sT0, sT0, sT1, sJ, sRB, sT0, sT1))
        a('s_lshr_b32 s%d, s%d, 2\ns_mul_i32 s%d, s%d, 7\ns_add_u32 s%d, s%d, s%d' % (sT0, sXC, sT0, sT0, sCB, sT0, sDB))
        vX, vW0, vW1, t0, t1 = V.get(), V.get(), V.get(), V.get(), V.get()
        a('v_lshlrev_b32 v%d, 10, v%d\nv_lshl_add_u32 v%d, v%d, 4, v%d' % (vX, vL15, vX, vG, vX))
        a('s_lshl_b32 s%d, s%d, 17\ns_lshl_b32 s%d, s%d, 15\ns_add_u32 s%d, s%d, s%d\ns_add_u32 s%d, s%d, 16384' % (sA, sRB, sT0, sW, sA, sA, sT0, sB, sA))
        a('s_and_b32 s%d, s%d, 1\ns_lshl_b32 s%d, s%d, 3' % (sT0, sW, sT0, sT0))
        a('v_lshl_add_u32 v%d, v%d, 1, s%d\nv_xor_b32 v%d, v%d, v%d' % (t0, vG, sT0, t0, t0, vL15))
        a('s_mul_i32 s%d, s%d, %d\ns_lshl_b32 s%d, s%d, 8\ns_add_u32 s%d, s%d, s%d' % (sT0, sW, 8 * 3584, sT1, sCB, sT0, sT0, sT1))
        a('v_mul_u32_u24 v%d, 3584, v%d\nv_lshl_add_u32 v%d, v%d, 4, v%d\nv_add_u32 v%d, s%d, v%d\nv_add_u32 v%d, %d, v%d' % (t1, vG, vW0, t0, t1, vW0, sT0, vW0, vW1, 14336 - 1024, vW0))
        a('s_lshl_b32 s%d, s%d, 11\ns_mov_b32 s%d, 0' % (sC, sW, sD))
        def loads(ks):
            return [lambda: a('buffer_load_dwordx4 %s, v%d, %s, s%d offen offset:%d' % (ar(ks * 4, 4), vX, sr(SX, 4), sA, ks * 64), tag=('c', ks // 2)),
                    lambda: a('buffer_load_dwordx4 %s, v%d, %s, s%d offen offset:%d' % (ar(64 + ks * 4, 4), vX, sr(SX, 4), sB, ks * 64), tag=('c', ks // 2)),
                    lambda: a('s_mov_b32 m0, s%d\ns_add_u32 s%d, s%d, 8192\nbuffer_load_dwordx4 v%d, %s, s%d offen lds' % (sC, sC, sC, vW0, sr(SW1, 4), sD), tag=('c', ks // 2)),
                    lambda: a('buffer_load_dwordx4 v%d, %s, s%d offen offset:1024 lds\ns_add_u32 s%d, s%d, 114688' % (vW1, sr(SW1, 4), sD, sD, sD), tag=('c', ks // 2))]
        for ks in range(2 * D):
            for f in loads(ks): f()
        vB1 = V.get(2)
        a('s_lshl_b32 s%d, s%d, 8\ns_lshl_b32 s%d, s%d, 6\ns_add_u32 s%d, s%d, s%d\nv_lshl_add_u32 v%d, v%d, 1, s%d' % (sT0, sCB, sT1, sW, sT0, sT0, sT1, t0, vL15, sT0))
        a('global_load_ushort v%d, v%d, %s\nglobal_load_ushort v%d, v%d, %s offset:32' % (vB1, t0, sr(P(11), 2), vB1 + 1, t0, sr(P(11), 2)), tag='b1')
        vT = V.get(8)
        a('v_lshl_add_u32 v%d, v%d, 3, v%d\nv_lshlrev_b32 v%d, 8, v%d\nv_lshl_add_u32 v%d, v%d, 3, v%d' % (t0, vG, vR, t0, t0, t0, vC, t0))
        a('v_and_b32 v%d, 1, v%d\nv_lshl_add_u32 v%d, v%d, 2, v%d' % (t1, vG, t1, t1, vR))
        a('s_lshl_b32 s%d, s%d, 1' % (sT0, sW))
        for s in range(8):
            a('s_add_u32 s%d, s%d, %d\ns_and_b32 s%d, s%d, 7' % (sT1, sT0, s, sT1, sT1))
            a('v_xor_b32 v%d, s%d, v%d\nv_lshl_add_u32 v%d, v%d, 5, v%d' % (vT + s, sT1, t1, vT + s, vT + s, t0))
        ones = V.get(4, 4)
        for i in range(4): a('v_mov_b32 v%d, 0x%x' % (ones + i, ONE2))
        acc = V.get(64, 4); ssum = V.get(8, 4); ssq = V.get(8, 4); cs = V.get(8, 4)
        NB = 6; buf = V.get(4 * NB, 4)
        self.stamp()
        pend = []
        def rd(i):
            ks, s = divmod(i, 8)
            if i % 16 == 0:
                c = i // 16
                a.wait(vm=('c', c)); a('s_barrier')
                if c + D < 8:
                    for k2 in (2 * (c + D), 2 * (c + D) + 1): pend.extend(loads(k2))
            if i == 64:
                assert True
            b = buf + 4 * (i % NB)
            if ks == 8: a('v_add_u32 v%d, 0x10000, v%d' % (vT + s, vT + s))
            o = (ks % 8) * 8192
            a('ds_read_b64_tr_b16 %s, v%d offset:%d' % (vr(b, 2), vT + s, o), tag=('f', i))
            a('ds_read_b64_tr_b16 %s, v%d offset:%d' % (vr(b + 2, 2), vT + s, o + 1024), tag=('f', i))
        for i in range(NB - 1): rd(i)
        mf = 'v_mfma_f32_16x16x32_bf16 %s, %s, %s, %s'
        for i in range(128):
            ks, s = divmod(i, 8)
            b = vr(buf + 4 * (i % NB), 4)
            X = [ar(ks * 4, 4), ar(64 + ks * 4, 4)]
            C = lambda r: vr(r, 4) if ks else '0'
            a.wait(lg=('f', i))
            a(mf % (vr(acc + 4 * s, 4), b, X[0], C(acc + 4 * s)))
            if i + NB - 1 < 128: rd(i + NB - 1)
            a(mf % (vr(acc + 32 + 4 * s, 4), b, X[1], C(acc + 32 + 4 * s)))
            if pend: pend.pop(0)()
            if s < 2: a(mf % (vr(cs + 4 * s, 4), vr(ones, 4), b, C(cs + 4 * s)))
            elif s < 4: a(mf % (vr(ssum + 4 * (s - 2), 4), vr(ones, 4), X[s - 2], C(ssum + 4 * (s - 2))))
            elif s < 6: a(mf % (vr(ssq + 4 * (s - 4), 4), X[s - 4], X[s - 4], C(ssq + 4 * (s - 4))))
        self.stamp()
        a.wait(vm='b1')
        ca = V.get(); tq = V.get(4, 2)
        a('s_lshl_b32 s%d, s%d, 8\ns_add_u32 s%d, s%d, %d\nv_lshl_add_u32 v%d, v%d, 3, s%d' % (sT0, sW, sT0, sT0, L_CT, ca, vL15, sT0))
        for e in range(2):
            q = tq + 2 * e
            a('v_cvt_pk_bf16_f32 v%d, v%d, v%d\nv_lshlrev_b32 v%d, 16, v%d\nv_sub_f32 v%d, v%d, v%d' % (q, cs + 4 * e, cs + 4 * e, q, q, t0, cs + 4 * e, q))
            a('v_cvt_pk_bf16_f32 v%d, v%d, v%d\nv_mov_b32 v%d, v%d' % (q, q, t0, q + 1, vB1 + e))
            a('ds_write_b64 v%d, %s offset:%d\nds_write_b64 v%d, %s offset:%d' % (ca, vr(q, 2), 128 * e, ca, vr(q, 2), 128 * e + 1024), tag='ct')
        dg = V.get(2); bi = V.get()
        a('v_lshrrev_b32 v%d, 2, v%d\nv_lshl_add_u32 v%d, v%d, 4, v%d\nv_lshlrev_b32 v%d, 2, v%d' % (bi, vL15, bi, bi, vL15, bi, bi))
        a('v_cmp_eq_u32 s[%d:%d], 1, v%d\nv_cmp_eq_u32 s[%d:%d], 2, v%d\nv_cmp_eq_u32 vcc, 3, v%d' % (sT1, sT2, vC, sT3, sT4, vC, vC))
        for tt in range(2):
            q = ssq + 4 * tt
            a('v_cndmask_b32 v%d, v%d, v%d, s[%d:%d]' % (dg + tt, q, q + 1, sT1, sT2))
            a('v_cndmask_b32 v%d, v%d, v%d, s[%d:%d]' % (dg + tt, dg + tt, q + 2, sT3, sT4))
            a('v_cndmask_b32 v%d, v%d, v%d, vcc' % (dg + tt, dg + tt, q + 3))
            a('ds_bpermute_b32 v%d, v%d, v%d' % (dg + tt, bi, dg + tt), tag='dg')
        a.wait(lg='all'); a('s_barrier')
        cf = V.get(16, 2)
        for s in range(8): a('ds_read_b64 %s, v%d offset:%d' % (vr(cf + 2 * s, 2), ca, 128 * s), tag=('cf', s))
        bc = V.get(4, 2); rr = V.get(4, 2); m, s_ = V.get(), V.get()
        a('v_cmp_eq_u32 vcc, 0, v%d' % vG)
        for tt in range(2):
            self.stats(ssum + 4 * tt, dg + tt, m, s_, rr + 2 * tt, t0)
            a('v_cvt_pk_bf16_f32 v%d, -v%d, -v%d\nv_lshrrev_b32 v%d, 16, v%d' % (m, m, m, s_, s_))
            a('v_cndmask_b32 v%d, 0, v%d, vcc\nv_cndmask_b32 v%d, 0, v%d, vcc' % (bc + 2 * tt, m, bc + 2 * tt + 1, s_))
        a.wait(lg='all')
        if self.cfg.get('fused'): self.w2_start()
        for tt in range(2):
            for s in range(8):
                r = acc + 32 * tt + 4 * s
                a('v_mfma_f32_16x16x16_bf16 %s, %s, %s, %s' % (vr(r, 4), vr(cf + 2 * s, 2), vr(bc + 2 * tt, 2), vr(r, 4)))
        a('s_lshl_b32 s%d, s%d, 2\ns_add_u32 s%d, s%d, s%d\ns_mul_i32 s%d, s%d, %d\ns_lshl_b32 s%d, s%d, 12\ns_add_u32 s%d, s%d, s%d' %
          (sT0, sRB, sT0, sT0, sW, sT0, sT0, 2 * 56 * 1024, sT1, sCB, sT0, sT0, sT1))
        ob = V.get(8, 4); tm = V.get(4, 2)
        for tt in range(2):
            for J in range(4):
                o = ob + 4 * (J & 1)
                for e in range(2):
                    r = acc + 32 * tt + 4 * (2 * J + e)
                    for hh in range(2):
                        a('v_pk_mul_f32 %s, %s, %s op_sel_hi:[1,0]' % (vr(r + 2 * hh, 2), vr(r + 2 * hh, 2), vr(rr + 2 * tt, 2)))
                    for i in range(4): a('v_max_f32 v%d, 0, v%d' % (r + i, r + i))
                    for hh in range(2):
                        a('v_pk_mul_f32 %s, %s, %s' % (vr(r + 2 * hh, 2), vr(r + 2 * hh, 2), vr(r + 2 * hh, 2)))
                    for hh in range(2):
                        a('v_cvt_pk_bf16_f32 v%d, v%d, v%d' % (o + 2 * e + hh, r + 2 * hh, r + 2 * hh + 1))
                a('s_add_u32 s%d, s%d, %d\ns_and_b32 s%d, s%d, 3\ns_lshl_b32 s%d, s%d, 10\ns_add_u32 s%d, s%d, s%d' % (sT1, sW, J, sT1, sT1, sT1, sT1, sT1, sT1, sT0))
                if tt: a('s_add_u32 s%d, s%d, %d' % (sT1, sT1, 56 * 1024))
                a('buffer_store_dwordx4 %s, v%d, %s, s%d offen%s' % (vr(o, 4), vL16, sr(SWS, 4), sT1, self.sc), tag='pub')
        self.stamp()

    def lnwg(self):
        a = self.a; V = Alloc(VBASE, 256)
        a('s_and_b32 s%d, s%d, 3\ns_lshl_b32 s%d, s%d, 3\ns_and_b32 s%d, s%d, 4\ns_add_u32 s%d, s%d, s%d\ns_add_u32 s%d, s%d, s%d\ns_sub_u32 s%d, s%d, 28' %
          (sT0, sXC, sT0, sT0, sT1, sXC, sT0, sT0, sT1, sT0, sT0, sJ, sRB, sT0))
        a('s_lshl_b32 s%d, s%d, 2\ns_add_u32 s%d, s%d, s%d\ns_lshl_b32 s%d, s%d, 14' % (sA, sRB, sA, sA, sW, sA, sA))
        vX, t0, t1 = V.get(), V.get(), V.get()
        a('v_lshlrev_b32 v%d, 10, v%d\nv_lshl_add_u32 v%d, v%d, 4, v%d' % (vX, vL15, vX, vG, vX))
        for ks in range(16):
            a('buffer_load_dwordx4 %s, v%d, %s, s%d offen offset:%d' % (ar(ks * 4, 4), vX, sr(SX, 4), sA, ks * 64), tag=('x', ks))
        ones = V.get(4, 4); sel = V.get(8, 4)
        for i in range(4): a('v_mov_b32 v%d, 0x%x' % (ones + i, ONE2))
        a('v_lshlrev_b32 v%d, 2, v%d\nv_sub_u32 v%d, v%d, v%d\nv_mov_b32 v%d, 0x3f80' % (t0, vG, t0, vL15, t0, t1))
        for i in range(4):
            a('v_cmp_eq_u32 vcc, %d, v%d\nv_cndmask_b32 v%d, 0, v%d, vcc\nv_lshlrev_b32 v%d, 16, v%d' % (i, t0, sel + i, t1, sel + 4 + i, sel + i))
        ssum, ssq = V.get(4, 4), V.get(4, 4)
        mf = 'v_mfma_f32_16x16x32_bf16 %s, %s, %s, %s'
        self.stamp()
        for ks in range(16):
            a.wait(vm=('x', ks))
            a(mf % (vr(ssum, 4), ar(ks * 4, 4), vr(ones, 4), vr(ssum, 4) if ks else '0'))
            a(mf % (vr(ssq, 4), ar(ks * 4, 4), ar(ks * 4, 4), vr(ssq, 4) if ks else '0'))
        self.stamp()
        a('v_mul_u32_u24 v%d, 80, v%d' % (t0, vG))
        for i in range(4): a('ds_bpermute_b32 v%d, v%d, v%d offset:%d' % (ssq + i, t0, ssq + i, 4 * i))
        a.wait(lg='all')
        nm, rr, s_ = V.get(4, 4), V.get(4, 4), V.get()
        for i in range(4):
            self.stats(ssum + i, ssq + i, nm + i, s_, rr + i, t0)
            a('v_sub_f32 v%d, 0, v%d' % (nm + i, nm + i))
        vO = V.get()
        a('v_lshlrev_b32 v%d, 6, v%d\nv_lshl_add_u32 v%d, v%d, 4, v%d' % (vO, vL15, vO, vG, vO))
        a('s_add_u32 s%d, s%d, 0x%x' % (sA, sA, WS_XT))
        if self.cfg.get('fused'): self.w2_start()
        dd = V.get(128, 4)
        for ks in range(16):
            for e in range(2): a(mf % (vr(dd + 8 * ks + 4 * e, 4), ar(ks * 4, 4), vr(sel + 4 * e, 4), vr(nm, 4)))
        npub = 0
        for ks in range(16):
            d = dd + 8 * ks
            for hh in range(4): a('v_pk_mul_f32 %s, %s, %s' % (vr(d + 2 * hh, 2), vr(d + 2 * hh, 2), vr(rr + 2 * (hh & 1), 2)))
            for hh in range(4): a('v_cvt_pk_bf16_f32 v%d, v%d, v%d' % (d + hh, d + 2 * hh, d + 2 * hh + 1))
            if ks == 4 or ks == 8 or ks == 12: a('s_add_u32 s%d, s%d, 4096' % (sA, sA))
            a('buffer_store_dwordx4 %s, v%d, %s, s%d offen offset:%d%s' % (vr(d, 4), vO, sr(SWS, 4), sA, (ks % 4) * 1024, self.sc), tag='pub')
        k = [i for i, t in enumerate(a.vm) if t == 'pub']
        if not self.cfg.get('fused'):
            a.vm = ['pub'] * 8
        else:
            a.wait(vm='pub'); self.set_flag('X'); a.vm = self.after_ln_vm

    def kgen_load(self, V):
        a = self.a
        self.kp = V.get(6); t0 = V.get()
        a('s_lshl_b32 s%d, s%d, 9\ns_lshl_b32 s%d, s%d, 7\ns_add_u32 s%d, s%d, s%d\nv_lshl_add_u32 v%d, v%d, 1, s%d' % (sT0, sPAIR, sT1, sW, sT0, sT0, sT1, t0, vLane, sT0))
        for i in range(6): a('global_load_short_d16_hi v%d, v%d, %s' % (self.kp + i, t0, sr(P(1 + i), 2)), tag='kp')
        self.kq = V.get(2)
        a('s_lshl_b32 s%d, s%d, 2\ns_and_b32 s%d, s%d, 2\ns_add_u32 s%d, s%d, s%d\nv_mov_b32 v%d, s%d' % (sT0, sPAIR, sT1, sW, sT0, sT0, sT1, t0, sT0))
        for i in range(2): a('global_load_short_d16_hi v%d, v%d, %s' % (self.kq + i, t0, sr(P(7 + i), 2)), tag='kp')
        V.put(t0)

    def kgen(self, V, hook=lambda: None):
        a = self.a; kp, kq = self.kp, self.kq
        a.wait(vm='kp')
        for i in range(6): a('v_and_b32 v%d, 0xffff0000, v%d' % (kp + i, kp + i))
        for i in range(2): a('v_and_b32 v%d, 0xffff0000, v%d' % (kq + i, kq + i))
        t = V.get(4, 2); wa = V.get()
        a('s_mov_b32 s%d, 0x3fb8aa3b\ns_mov_b32 s%d, 0x32a57060' % (sT0, sT1))
        a('v_mul_f32 v%d, s%d, v%d\nv_fma_f32 v%d, v%d, s%d, -v%d\nv_fma_f32 v%d, v%d, s%d, v%d' % (t, sT0, kq, t + 1, kq, sT0, t, t + 1, kq, sT1, t + 1))
        a('v_exp_f32 v%d, v%d\nv_mul_f32 v%d, 0x3f317218, v%d\nv_fma_f32 v%d, v%d, v%d, v%d' % (t, t, t + 1, t + 1, t, t, t + 1, t))
        a('v_cvt_pk_bf16_f32 v%d, v%d, v%d\nv_lshlrev_b32 v%d, 16, v%d' % (t, t, t, kq, t))
        a('v_mul_f32 v%d, v%d, v%d\nv_mul_f32 v%d, v%d, v%d\nv_mul_f32 v%d, v%d, v%d\nv_mul_f32 v%d, v%d, v%d' % (kp, kq, kp, kp + 1, kq, kp + 1, kp + 2, kq, kp + 2, kp + 3, kq, kp + 3))
        a('v_mul_f32 v%d, s%d, v%d\nv_mul_f32 v%d, 0.15915494, v%d' % (kp, sT0, kp, kp + 1, kp + 1))
        a('s_lshr_b32 s%d, s%d, 1\ns_mul_i32 s%d, s%d, 34816\ns_and_b32 s%d, s%d, 1\ns_lshl_b32 s%d, s%d, 8\ns_add_u32 s%d, s%d, s%d\ns_add_u32 s%d, s%d, %d' %
          (sT2, sW, sE, sT2, sT3, sW, sT4, sT3, sT4, sT4, sE, sT4, sT4, L_TAB))
        a('v_lshl_add_u32 v%d, v%d, 2, s%d' % (wa, vLane, sT4))
        R = {}
        def new(n): R[n] = V.get(2); return R[n]
        def direct(n, l):
            z = new(n); fl = {1: '1.0', 8: '0x41000000', 256: '0x43800000'}[l]
            a('v_mul_f32 v%d, %s, v%d\nv_mul_f32 v%d, %s, v%d\nv_exp_f32 v%d, v%d\nv_fract_f32 v%d, v%d' % (t, fl, kp, t + 1, fl, kp + 1, t, t, t + 1, t + 1))
            a('v_cos_f32 v%d, v%d\nv_sin_f32 v%d, v%d' % (z, t + 1, z + 1, t + 1))
            a('v_pk_mul_f32 %s, %s, %s op_sel_hi:[1,0]' % (vr(z, 2), vr(z, 2), vr(t, 2)))
        tmp = [V.get(2) for _ in range(4)]; pk = [V.get() for _ in range(4)]; cnt = [0]
        def emit(group):
            for i, (z, x, y, row, neg) in enumerate(group):
                if x is not None: a('v_pk_mul_f32 %s, %s, %s op_sel_hi:[0,1]' % (vr(tmp[i], 2), vr(x, 2), vr(y, 2)))
            for i, (z, x, y, row, neg) in enumerate(group):
                if x is not None: a('v_pk_fma_f32 %s, %s, %s, %s op_sel:[1,1,0] op_sel_hi:[1,0,1] neg_lo:[0,1,0]' % (vr(z, 2), vr(x, 2), vr(y, 2), vr(tmp[i], 2)))
            for i, (z, x, y, row, neg) in enumerate(group):
                if row is not None: a('v_cvt_pk_bf16_f32 v%d, v%d, %sv%d' % (pk[i], z, '-' if neg else '', z + 1))
            for i, (z, x, y, row, neg) in enumerate(group):
                if row is not None: a('ds_write_b32 v%d, v%d offset:%d' % (wa, pk[i], row * 544), tag='tab')
            cnt[0] += 1
            if cnt[0] % 3 == 0: hook()
        direct('w1', 1); direct('w8', 8); direct('Q1', 256)
        vrow = {0: 0, 1: 1, 2: 2, 3: 3, 4: 16, 5: 17, 6: 18, 7: 19, 256: 4, 258: 5, 260: 6, 262: 7, 264: 20, 512: 8, 516: 9, 520: 10,
                768: 24, 772: 25, 776: 26, 1024: 12, 1032: 13, 1280: 14, 1288: 15, 1536: 28, 1544: 29, 1792: 30, 1800: 31}
        VR = lambda l: 32 + vrow[l]
        a('v_mov_b32 v%d, 0x3f80\nds_write_b32 v%d, v%d offset:%d' % (t + 2, wa, t + 2, VR(0) * 544), tag='tab')
        U = [new('U%d' % i) for i in range(4)]
        emit([(U[0], kp + 4, kp + 2, 0, 1), (new('w16'), R['w8'], R['w8'], None, 0), (new('w2'), R['w1'], R['w1'], VR(2), 0), (new('Q2'), R['Q1'], R['Q1'], VR(512), 0)])
        emit([(R['w1'], None, None, VR(1), 0), (R['Q1'], None, None, VR(256), 0), (U[1], U[0], R['w8'], 1, 1), (new('w32'), R['w16'], R['w16'], None, 0)])
        emit([(U[2], U[0], R['w16'], 2, 1), (U[3], U[1], R['w16'], 3, 1), (new('w4'), R['w2'], R['w2'], VR(4), 0), (new('Q4'), R['Q2'], R['Q2'], VR(1024), 0)])
        emit([(new('w3'), R['w2'], R['w1'], VR(3), 0), (new('Q3'), R['Q2'], R['Q1'], VR(768), 0), (new('w6'), R['w4'], R['w2'], VR(6), 0), (new('Q5'), R['Q4'], R['Q1'], VR(1280), 0)])
        sc = [new('s%d' % i) for i in range(4)]
        emit([(sc[0], R['w4'], R['w1'], VR(5), 0), (sc[1], R['w4'], R['w3'], VR(7), 0), (new('Q6'), R['Q4'], R['Q2'], VR(1536), 0), (new('Q7'), R['Q4'], R['Q3'], VR(1792), 0)])
        emit([(sc[0], R['Q1'], R['w2'], VR(258), 0), (sc[1], R['Q1'], R['w4'], VR(260), 0), (sc[2], R['Q1'], R['w6'], VR(262), 0), (sc[3], R['Q1'], R['w8'], VR(264), 0)])
        emit([(sc[0], R['Q2'], R['w4'], VR(516), 0), (sc[1], R['Q2'], R['w8'], VR(520), 0), (sc[2], R['Q3'], R['w4'], VR(772), 0), (sc[3], R['Q3'], R['w8'], VR(776), 0)])
        emit([(sc[0], R['Q4'], R['w8'], VR(1032), 0), (sc[1], R['Q5'], R['w8'], VR(1288), 0), (sc[2], R['Q6'], R['w8'], VR(1544), 0), (sc[3], R['Q7'], R['w8'], VR(1800), 0)])
        for b in range(1, 8):
            emit([(U[i], U[i], R['w32'], 4 * b + i, 1) for i in range(4)])
        for r in R.values(): V.put(r, 2)
        for r in tmp: V.put(r, 2)
        for r in pk: V.put(r)
        V.put(wa); V.put(kp, 6)
        self.kg_t = t

    def kgen2(self, V, hook=lambda: None):
        a = self.a; t = self.kg_t; kq = self.kq
        aU, aV, ka = V.get(), V.get(), V.get()
        a('s_and_b32 s%d, s%d, 1\ns_mul_i32 s%d, s%d, %d\ns_add_u32 s%d, s%d, %d\ns_add_u32 s%d, s%d, s%d' % (sT3, sW, sT0, sT3, 16 * 544, sT1, sE, L_TAB, sT0, sT0, sT1))
        a('v_mul_u32_u24 v%d, 544, v%d\nv_lshl_add_u32 v%d, v%d, 4, v%d\nv_add_u32 v%d, s%d, v%d\nv_add_u32 v%d, s%d, v%d' % (t, vL15, t, vG, t, aU, sT0, t, aV, sT1, t))
        fr = V.get(96, 4); d0 = V.get(8, 4)
        def rd(ks):
            a('ds_read_b128 %s, v%d offset:%d' % (vr(fr + 12 * ks, 4), aU, 64 * ks), tag=('k', ks))
            a('ds_read_b128 %s, v%d offset:%d' % (vr(fr + 12 * ks + 4, 4), aV, 32 * 544 + 64 * ks), tag=('k', ks))
            a('ds_read_b128 %s, v%d offset:%d' % (vr(fr + 12 * ks + 8, 4), aV, 48 * 544 + 64 * ks), tag=('k', ks))
        for ks in range(4): rd(ks)
        a('s_lshr_b32 s%d, s%d, 1\ns_mul_i32 s%d, s%d, 4608\ns_lshl_b32 s%d, s%d, 8\ns_add_u32 s%d, s%d, %d\ns_add_u32 s%d, s%d, s%d' % (sT2, sW, sF, sT2, sT0, sT3, sF, sF, L_KX, sT0, sT0, sF))
        a('v_mov_b32 v%d, 0x100\nv_lshlrev_b32 v%d, v%d, v%d\nv_and_b32 v%d, 0xe00, v%d' % (t, t, vG, t, t, t))
        a('v_lshl_add_u32 v%d, v%d, 4, v%d\nv_add_u32 v%d, s%d, v%d' % (t, vL15, t, ka, sT0, t))
        a('v_mov_b32 v%d, 0\nv_lshl_add_u32 v%d, v%d, 2, s%d\nds_write_b32 v%d, v%d' % (t + 1, t + 2, vLane, sT0, t + 2, t + 1), tag='z')
        for ks in range(8):
            a.wait(lg=('k', ks))
            for tau in range(2):
                a('v_mfma_f32_16x16x32_bf16 %s, %s, %s, %s' % (vr(d0 + 4 * tau, 4), vr(fr + 12 * ks + 4 + 4 * tau, 4), vr(fr + 12 * ks, 4), vr(d0 + 4 * tau, 4) if ks else '0'))
            if ks + 4 < 8: rd(ks + 4)
        hook()
        a('v_and_b32 v%d, 0x7f, v0\nv_cmp_eq_u32 vcc, 0, v%d\nv_cndmask_b32 v%d, 0, v%d, vcc' % (t, t, t, kq + 1))
        a('v_and_b32 v%d, 1, v0\nv_cmp_eq_u32 vcc, 0, v%d' % (t + 1, t + 1))
        a('v_add_f32 v%d, v%d, v%d' % (d0, d0, t))
        q = fr
        cv = lambda d, x, y: a('v_cvt_pk_bf16_f32 v%d, v%d, v%d' % (d, x, y))
        T0, T1 = d0, d0 + 4
        cv(q, T0, T0 + 1); cv(q + 1, T0 + 2, T0 + 3); cv(q + 2, T1, T1 + 1); cv(q + 3, T1 + 2, T1 + 3)
        cv(q + 4, T0, T0); cv(q + 5, T0 + 1, T0 + 2); cv(q + 6, T0 + 2, T0 + 2); cv(q + 7, T0 + 3, T1)
        for i, T in enumerate((T0, T1)):
            b = q + 8 + 4 * i
            cv(b, T, T); cv(b + 1, T, T + 1); cv(b + 2, T + 1, T + 1); cv(b + 3, T + 2, T + 2)
        for i in range(4):
            b = q + 16 + 4 * i; v0 = d0 + 2 * i
            a('v_cndmask_b32 v%d, v%d, v%d, vcc' % (t, v0 + 1, v0))
            cv(b, v0, v0); cv(b + 1, v0, v0); cv(b + 2, t, v0 + 1); cv(b + 3, v0 + 1, v0 + 1)
        a('s_mov_b64 exec, 0xffff\nds_write_b128 v%d, %s offset:512' % (ka, vr(q, 4)), tag='kx')
        a('s_lshl_b64 exec, exec, 16\nds_write_b128 v%d, %s offset:512' % (ka, vr(q + 4, 4)), tag='kx')
        a('s_lshl_b64 exec, exec, 16')
        for i in range(2): a('ds_write_b128 v%d, %s offset:%d' % (ka, vr(q + 8 + 4 * i, 4), 512 + 512 * i), tag='kx')
        a('s_lshl_b64 exec, exec, 16')
        for i in range(4): a('ds_write_b128 v%d, %s offset:%d' % (ka, vr(q + 16 + 4 * i, 4), 512 + 512 * i), tag='kx')
        a('s_mov_b64 exec, -1')
        a.wait(lg='kx')
        V.put(fr, 96); V.put(d0, 8); V.put(aU); V.put(aV); V.put(ka); V.put(t, 4); V.put(kq, 2)

    def xt_load(self, V):
        a = self.a
        self.xl = V.get(12, 4); t0, t1 = V.get(), V.get()
        a('v_lshrrev_b32 v%d, 1, v0\nv_lshlrev_b32 v%d, 14, v%d\nv_and_b32 v%d, 1, v0\nv_lshl_add_u32 v%d, v%d, 5, v%d' % (t0, t0, t0, t1, t0, t1, t0))
        a('v_cmp_eq_u32 vcc, 0, v%d\nv_mov_b32 v%d, %d\nv_cndmask_b32 v%d, -16, v%d, vcc\nv_add_u32 v%d, v%d, v%d' % (t1, t1, -16384 + 48, t1, t1, t1, t0, t1))
        a('s_lshl_b32 s%d, s%d, 6\ns_add_u32 s%d, s%d, 0x%x' % (sT0, sPAIR, sT0, sT0, WS_XT))
        a('buffer_load_dwordx4 %s, v%d, %s, s%d offen%s' % (vr(self.xl + 4, 4), t0, sr(SWS, 4), sT0, self.sc), tag='xt')
        a('buffer_load_dwordx4 %s, v%d, %s, s%d offen offset:16%s' % (vr(self.xl + 8, 4), t0, sr(SWS, 4), sT0, self.sc), tag='xt')
        a('buffer_load_dwordx4 %s, v%d, %s, s%d offen%s' % (vr(self.xl, 4), t1, sr(SWS, 4), sT0, self.sc), tag='xt')
        V.put(t0); V.put(t1)

    def xcopies(self, V):
        a = self.a; xl = self.xl
        wa = V.get(); q = V.get(12, 4); z = V.get(2)
        a('v_lshlrev_b32 v%d, 4, v0\nv_add_u32 v%d, %d, v%d' % (wa, wa, L_XC + 32, wa))
        a('v_lshrrev_b32 v%d, 3, v%d\nv_mul_u32_u24 v%d, 4160, v%d\nv_and_b32 v%d, 7, v%d\nv_lshl_add_u32 v%d, v%d, 2, v%d\nv_add_u32 v%d, %d, v%d\nv_mov_b32 v%d, 0' %
          (z, vLane, z, z, z + 1, vLane, z, z + 1, z, z, L_XC, z, z + 1))
        a('ds_write_b32 v%d, v%d' % (z, z + 1), tag='xc')
        a.wait(vm='xt')
        for ch in range(2):
            q0, q1, c0, c1, c2, c3 = xl + 2 * ch, xl + 2 * ch + 1, xl + 4 + 2 * ch, xl + 5 + 2 * ch, xl + 8 + 2 * ch, xl + 9 + 2 * ch
            o = ch * 16640
            al = lambda d, hi, lo: a('v_alignbit_b32 v%d, v%d, v%d, 16' % (d, hi, lo))
            if ch: a.wait(lg='xc')
            a('ds_write_b64 v%d, %s offset:%d\nds_write_b64 v%d, %s offset:%d' % (wa, vr(c0, 2), o, wa, vr(c2, 2), o + 8), tag='xc')
            al(q, c0, q1); al(q + 1, c1, c0); al(q + 2, c2, c1); al(q + 3, c3, c2)
            a('ds_write_b128 v%d, %s offset:%d' % (wa, vr(q, 4), o + 4160), tag='xc')
            a('v_mov_b32 v%d, v%d\nv_mov_b32 v%d, v%d\nv_mov_b32 v%d, v%d\nv_mov_b32 v%d, v%d' % (q + 4, q1, q + 5, c0, q + 6, c1, q + 7, c2))
            a('ds_write_b128 v%d, %s offset:%d' % (wa, vr(q + 4, 4), o + 2 * 4160), tag='xc')
            al(q + 8, q1, q0); al(q + 9, c0, q1); al(q + 10, c1, c0); al(q + 11, c2, c1)
            a('ds_write_b128 v%d, %s offset:%d' % (wa, vr(q + 8, 4), o + 3 * 4160), tag='xc')
        a.wait(lg='xc')
        V.put(wa); V.put(q, 12); V.put(z, 2); V.put(xl, 12)

    def conv(self, V, hook=lambda: None):
        a = self.a
        aG, aF, t = V.get(), V.get(), V.get()
        a('s_lshr_b32 s%d, s%d, 1\ns_mul_i32 s%d, s%d, 16640\ns_and_b32 s%d, s%d, 1\ns_lshl_b32 s%d, s%d, 8\ns_add_u32 s%d, s%d, s%d\ns_add_u32 s%d, s%d, %d' %
          (sT2, sW, sT0, sT2, sT3, sW, sT1, sT3, sT0, sT0, sT1, sT0, sT0, L_XC + 56))
        a('v_mul_u32_u24 v%d, 4160, v%d\nv_lshl_add_u32 v%d, v%d, 3, v%d\nv_lshlrev_b32 v%d, 4, v%d\nv_sub_u32 v%d, v%d, v%d\nv_add_u32 v%d, s%d, v%d' %
          (aG, vR, aG, vC, aG, t, vG, aG, aG, t, aG, sT0, aG))
        a('s_mul_i32 s%d, s%d, 4608\ns_sub_u32 s%d, s%d, s%d\ns_add_u32 s%d, s%d, %d' % (sT0, sT2, sT0, sT0, sT1, sT0, sT0, L_KX + 480 - 192))
        a('v_lshl_add_u32 v%d, v%d, 5, v%d\nv_add_u32 v%d, s%d, v%d' % (aF, vL15, t, aF, sT0, aF))
        acc = V.get(32, 4); F = [V.get(32, 4) for _ in range(2)]; Gm = [V.get(32, 4) for _ in range(2)]
        def rd(i, k):
            a('ds_read_b128 %s, v%d offset:%d' % (vr(F[i & 1] + 4 * k, 4), aF, 512 * k + 64 * (3 - i)), tag=('cv', i, k))
            a('ds_read_b64_tr_b16 %s, v%d offset:%d' % (vr(Gm[i & 1] + 4 * k, 2), aG, 512 * k + 64 * i + 8), tag=('cv', i, k))
            a('ds_read_b64_tr_b16 %s, v%d offset:%d' % (vr(Gm[i & 1] + 4 * k + 2, 2), aG, 512 * k + 64 * i), tag=('cv', i, k))
        seq = [(i, k) for i in range(4) for k in range(8)]
        AH = 4
        for x in seq[:AH]: rd(*x)
        started = set()
        for n, (i, k) in enumerate(seq):
            a.wait(lg=('cv', i, k))
            pairs = [(u, v) for u in range(k + 1) for v in range(k + 1) if max(u, v) == k and u + v <= 7]
            pairs.sort(key=lambda p: (p[0] + p[1]) % 2 * 100 + p[0])
            for m, (u, v) in enumerate(pairs):
                jt = u + v
                a('v_mfma_f32_16x16x32_bf16 %s, %s, %s, %s' % (vr(acc + 4 * jt, 4), vr(Gm[i & 1] + 4 * v, 4), vr(F[i & 1] + 4 * u, 4), vr(acc + 4 * jt, 4) if jt in started else '0'))
                started.add(jt)
                if m == 0 and n + AH < len(seq): rd(*seq[n + AH])
            if k in (3, 6): hook()
        a('s_lshl_b32 s%d, s%d, 12\ns_add_u32 s%d, s%d, %d\nv_add_u32 v%d, s%d, v%d' % (sT0, sW, sT0, sT0, L_RED, aG, sT0, vL16))
        a('v_xor_b32 v%d, 0x1000, v%d' % (aF, aG))
        l1, l2 = a.newlabel('CV'), a.newlabel('CV')
        a('s_nop 7')
        a('s_cmp_eq_u32 s%d, 0\ns_cbranch_scc1 %s' % (sT3, l1))
        for j in range(4): a('ds_write_b128 v%d, %s offset:%d' % (aF, vr(acc + 4 * j, 4), 1024 * j), tag='cr')
        for j in range(16): a('v_mov_b32 v%d, v%d' % (F[0] + j, acc + 16 + j))
        a('s_branch %s' % l2)
        a.label(l1); a.lg = a.lg[:-4]
        for j in range(4): a('ds_write_b128 v%d, %s offset:%d' % (aF, vr(acc + 16 + 4 * j, 4), 1024 * j), tag='cr')
        for j in range(16): a('v_mov_b32 v%d, v%d' % (F[0] + j, acc + j))
        a.label(l2)
        a.wait(lg='all'); a('s_barrier')
        for j in range(4): a('ds_read_b128 %s, v%d offset:%d' % (vr(F[1] + 4 * j, 4), aG, 1024 * j), tag=('cr', j))
        a('s_lshl_b32 s%d, s%d, 13\ns_lshl_b32 s%d, s%d, 11\ns_add_u32 s%d, s%d, s%d\ns_add_u32 s%d, s%d, 0x%x' % (sT0, sPAIR, sT1, sW, sT0, sT0, sT1, sT0, sT0, WS_YT))
        a('v_lshlrev_b32 v%d, 5, v%d\nv_lshl_add_u32 v%d, v%d, 3, v%d' % (t, vL15, t, vG, t))
        for j in range(4):
            a.wait(lg=('cr', j))
            x, y = F[0] + 4 * j, F[1] + 4 * j
            a('v_pk_add_f32 %s, %s, %s\nv_pk_add_f32 %s, %s, %s' % (vr(x, 2), vr(x, 2), vr(y, 2), vr(x + 2, 2), vr(x + 2, 2), vr(y + 2, 2)))
            a('v_cvt_pk_bf16_f32 v%d, v%d, v%d\nv_cvt_pk_bf16_f32 v%d, v%d, v%d' % (Gm[0] + 2 * j, x, x + 1, Gm[0] + 2 * j + 1, x + 2, x + 3))
            a('buffer_store_dwordx2 %s, v%d, %s, s%d offen offset:%d%s' % (vr(Gm[0] + 2 * j, 2), t, sr(SWS, 4), sT0, 512 * j, self.sc), tag='ypub')
        V.put(acc, 32)
        for r in F + Gm: V.put(r, 32)
        V.put(aG); V.put(aF); V.put(t)

    W2V = 248
    def w2_start(self):
        a = self.a; v = self.W2V; t = v + 4
        a('v_lshrrev_b32 v%d, 3, v%d\nv_lshlrev_b32 v%d, 10, v%d\nv_and_b32 v%d, 1, v%d\nv_lshlrev_b32 v%d, 2, v%d' % (v, vLane, v, v, t, vG, t, t))
        a('v_and_b32 v%d, 7, v%d\nv_xor_b32 v%d, v%d, v%d\nv_lshl_add_u32 v%d, v%d, 4, v%d' % (t + 1, vLane, t, t, t + 1, v, t, v))
        a('s_lshl_b32 s%d, s%d, 7\nv_add_u32 v%d, s%d, v%d' % (sC, sDB, v, sC, v))
        for i in range(1, 4): a('v_add_u32 v%d, %d, v%d' % (v + i, 7168 * i, v))
        a('s_mul_i32 s%d, s%d, 12288\ns_add_u32 s%d, s%d, %d\ns_mul_i32 s%d, s%d, %d' % (sC, sW, sC, sC, L_W2, sD, sW, 14 * 32768))
        a('v_lshl_add_u32 v%d, v%d, 2, v%d\nv_lshlrev_b32 v%d, 7, v%d\nv_lshl_add_u32 v%d, v%d, 4, v%d\nv_add_u32 v%d, s%d, v%d' % (t, vG, vR, t, t, t, vC, t, t, sC, t))
        a('v_and_b32 v%d, 2, v%d\nv_lshl_add_u32 v%d, v%d, 5, v%d\nv_xor_b32 v%d, 64, v%d' % (t + 1, vR, t, t + 1, t, t + 1, t))
        self.w2_dma = 0; self.w2_rd = 0
        for _ in range(3): self.w2_issue()
    def w2_issue(self):
        a = self.a; q = self.w2_dma; v = self.W2V
        a('s_add_u32 m0, s%d, %d' % (sC, 4096 * (q % 3)))
        for i in range(4): a('buffer_load_dwordx4 v%d, %s, s%d offen offset:%d lds' % (v + i, sr(SW2, 4), sD, 1024 * i), tag=('w2', q))
        a('s_add_u32 s%d, s%d, 32768' % (sD, sD))
        self.w2_dma += 1
    def w2_step(self):
        a = self.a; t = self.W2V + 4
        if self.w2_dma < 14 and self.w2_dma < self.w2_rd + 3:
            a.wait(lg=('w2r', self.w2_dma - 3)); self.w2_issue()
        if self.w2_rd < 14:
            q = self.w2_rd
            a.wait(vm=('w2', q))
            for j in range(4):
                for h in range(2):
                    a('ds_read_b64_tr_b16 %s, v%d offset:%d' % (ar(16 * q + 4 * j + 2 * h, 2), t + (j >> 1), 4096 * (q % 3) + 2048 * h + 8 * (j & 1)), tag=('w2r', q))
            self.w2_rd += 1

    def g2_pre(self, V):
        a = self.a
        self.xb = V.get(16, 4); self.vo = V.get(); t = V.get(); self.xraw = V.get(16, 4)
        a('s_lshl_b32 s%d, s%d, 7\nv_lshl_add_u32 v%d, v%d, 4, s%d\nv_lshl_add_u32 v%d, v%d, 10, v%d' % (sT0, sDB, t, vG, sT0, self.vo, vL15, t))
        a('s_lshl_b32 s%d, s%d, 16\ns_lshl_b32 s%d, s%d, 14\ns_add_u32 s%d, s%d, s%d\nv_add_u32 v%d, s%d, v%d' % (sT0, sRT, sT1, sW, sT0, sT0, sT1, self.vo, sT0, self.vo))
        for J in range(2):
            a('buffer_load_dwordx4 %s, v%d, %s, 0 offen offset:%d' % (vr(self.xraw + 4 * J, 4), self.vo, sr(SX, 4), 64 * J), tag='xb')
            a('global_load_dwordx4 %s, v%d, %s offset:%d' % (vr(self.xraw + 8 + 4 * J, 4), t, sr(P(13), 2), 64 * J), tag='xb')
        V.put(t)
    def g2_pre2(self, V):
        a = self.a; t = V.get(2)
        a.wait(vm='xb')
        for k in range(8):
            x, b, o = self.xraw + k, self.xraw + 8 + k, self.xb + 2 * k
            a('v_lshlrev_b32 v%d, 16, v%d\nv_and_b32 v%d, 0xffff0000, v%d\nv_lshlrev_b32 v%d, 16, v%d\nv_and_b32 v%d, 0xffff0000, v%d' % (o, x, o + 1, x, t, b, t + 1, b))
            a('v_pk_add_f32 %s, %s, %s' % (vr(o, 2), vr(o, 2), vr(t, 2)))
        V.put(t, 2); V.put(self.xraw, 16)
    def h_setup(self, V, NH):
        a = self.a
        self.NH = NH; self.hb = V.get(16 * NH, 4); self.hq = 0
        for i, s in enumerate((sA, sB, sE, sF)):
            a('s_xor_b32 s%d, s%d, %d\ns_lshl_b32 s%d, s%d, 2\ns_add_u32 s%d, s%d, s%d\ns_mul_i32 s%d, s%d, 57344\ns_mul_i32 s%d, s%d, 14336\ns_add_u32 s%d, s%d, s%d' %
              (sT0, sW, i, sT1, sRT, sT0, sT0, sT1, sT0, sT0, sT1, sW, s, sT0, sT1))
        self.hv = V.get(4)
        for i in range(4): a('v_add_u32 v%d, %d, v%d' % (self.hv + i, 4096 * i, vL16))
    def h_load(self, q, tt):
        self.a('buffer_load_dwordx4 %s, v%d, %s, s%d offen offset:%d%s' % (vr(self.hb + 16 * (q % self.NH) + 4 * tt, 4), self.hv + q // 4, sr(SWS, 4), (sA, sB, sE, sF)[tt], 1024 * (q % 4), self.sc), tag=('h', q, tt))
    def gemm2(self, V, ywait=lambda: None, ypos=9):
        a = self.a; NH = self.NH
        acc = [[self.xb + 4 * j] + [V.get(4, 4) for _ in range(3)] for j in range(4)]
        yv, t = V.get(), V.get(); yf = V.get(8, 2); idn = V.get(2)
        a.wait(lg='all')
        for q in range(14):
            for tt in range(4):
                a.wait(vm=('h', q, tt))
                for j in range(4):
                    c = vr(acc[j][tt], 4)
                    a('v_mfma_f32_16x16x32_bf16 %s, %s, %s, %s' % (c, ar(16 * q + 4 * j, 4), vr(self.hb + 16 * (q % NH) + 4 * tt, 4), c if (q or tt == 0) else '0'))
                if q + NH < 14: self.h_load(q + NH, tt)
            if q == ypos:
                ywait()
                a('v_lshl_add_u32 v%d, v%d, 3, v%d\nv_lshlrev_b32 v%d, 12, v%d\nv_lshl_add_u32 v%d, v%d, 3, v%d' % (yv, vR, vC, yv, yv, yv, vG, yv))
                a('s_lshl_b32 s%d, s%d, 18\ns_lshl_b32 s%d, s%d, 7\ns_add_u32 s%d, s%d, s%d\ns_lshl_b32 s%d, s%d, 5\ns_add_u32 s%d, s%d, s%d\ns_add_u32 s%d, s%d, 0x%x' %
                  (sT0, sDB, sT1, sRT, sT0, sT0, sT1, sT1, sW, sT0, sT0, sT1, sT0, sT0, WS_YT))
                for j in range(4):
                    a('buffer_load_dwordx2 %s, v%d, %s, s%d offen%s' % (vr(yf + 2 * j, 2), yv, sr(SWS, 4), sT0, self.sc), tag='y')
                    if j < 3: a('s_add_u32 s%d, s%d, %d' % (sT0, sT0, (4 if j != 1 else 28) * 4096))
                a('v_lshlrev_b32 v%d, 2, v%d\nv_sub_u32 v%d, v%d, v%d\nv_mov_b32 v%d, 0x3f80\nv_mov_b32 v%d, 0' % (t, vG, t, vL15, t, idn, idn + 1))
                a('v_cmp_gt_u32 vcc, 4, v%d\nv_lshlrev_b32 v%d, 4, v%d\nv_cndmask_b32 v%d, 0, v%d, vcc\nv_lshlrev_b64 %s, v%d, %s' % (t, t, t, idn, idn, vr(idn, 2), t, vr(idn, 2)))
        self.stamp()
        wa = V.get(3)
        for k in range(1, 4):
            a('s_xor_b32 s%d, s%d, %d\ns_mul_i32 s%d, s%d, 12288\ns_add_u32 s%d, s%d, %d\nv_add_u32 v%d, s%d, v%d' % (sT0, sW, k, sT0, sT0, sT0, sT0, L_RED + 4096 * (k - 1), wa + k - 1, sT0, vL16))
        for k in range(1, 4):
            for j in range(4): a('ds_write_b128 v%d, %s offset:%d' % (wa + k - 1, vr(acc[j][k], 4), 1024 * j), tag='rw')
        a.wait(vm='y')
        for j in range(4): a('v_mfma_f32_16x16x16_bf16 %s, %s, %s, %s' % (vr(acc[j][0], 4), vr(yf + 2 * j, 2), vr(idn, 2), vr(acc[j][0], 4)))
        a('s_mul_i32 s%d, s%d, 12288\ns_add_u32 s%d, s%d, %d\nv_add_u32 v%d, s%d, v%d' % (sT0, sW, sT0, sT0, L_RED, t, sT0, vL16))
        a.wait(lg='all'); a('s_barrier')
        rb = self.hb
        for j in range(4):
            for k in range(3): a('ds_read_b128 %s, v%d offset:%d' % (vr(rb + 12 * j + 4 * k, 4), t, 4096 * k + 1024 * j), tag=('rr', j))
        ob = rb + 48
        for j in range(4):
            a.wait(lg=('rr', j))
            c = acc[j][0]; r = rb + 12 * j
            for hh in (0, 2):
                a('v_pk_add_f32 %s, %s, %s' % (vr(c + hh, 2), vr(c + hh, 2), vr(r + hh, 2)))
                a('v_pk_add_f32 %s, %s, %s' % (vr(r + 4 + hh, 2), vr(r + 4 + hh, 2), vr(r + 8 + hh, 2)))
            for hh in (0, 2): a('v_pk_add_f32 %s, %s, %s' % (vr(c + hh, 2), vr(c + hh, 2), vr(r + 4 + hh, 2)))
            for hh in (0, 2): a('v_cvt_pk_bf16_f32 v%d, v%d, v%d' % (ob + 2 * j + hh // 2, c + hh, c + hh + 1))
            if j & 1: a('buffer_store_dwordx4 %s, v%d, %s, 0 offen offset:%d' % (vr(ob + 4 * (j >> 1), 4), self.vo, sr(SOUT, 4), 64 * (j >> 1)))

    def build_split(self):
        a = self.a
        names = ['p1_kernel', 'p2_kernel', 'p3_kernel']
        self.header(names[0]); self.phase1(); self.write_stamps(0); self.footer(names[0])
        self.header(names[1]); V = Alloc(VBASE, 248)
        self.kgen_load(V); self.xt_load(V); self.kgen(V); self.stamp(); a.wait(lg='all'); a('s_barrier'); self.kgen2(V); self.stamp(); self.xcopies(V)
        a.wait(lg='all'); a('s_barrier'); self.stamp(); self.conv(V); self.stamp(); self.write_stamps(1); self.footer(names[1])
        self.header(names[2]); V = Alloc(VBASE, 248)
        self.g2_pre(V); self.w2_start(); self.h_setup(V, 8)
        for q in range(8):
            for tt in range(4): self.h_load(q, tt)
        self.g2_pre2(V)
        while self.w2_rd < 14: self.w2_step()
        self.stamp()
        self.gemm2(V); self.stamp(); self.write_stamps(2); self.footer(names[2])
        return names
    def finish(self, names):
        hdr = ''
        if len(names) == 1:
            hdr += '; @launch grid=(256,1,1) block=(256,1,1) lds=%d\n' % LDS_BYTES
        else:
            for n in names: hdr += '; @launch kernel=%s grid=(256,1,1) block=(256,1,1) lds=%d\n' % (n, LDS_BYTES)
        body = '.amdgcn_target "amdgcn-amd-amdhsa--gfx950"\n.text\n' + self.a.text()
        if self.cfg.get('align', True): body = align8(body)
        return hdr + body + '\n.section .rodata,"a"\n' + ''.join(self.kd(n) for n in dict.fromkeys(names))

if __name__ == '__main__':
    cfg = {}
    for kv in sys.argv[3:]:
        k, v = kv.split('='); cfg[k] = int(v)
    mode = sys.argv[1]
    if mode == 'fused': cfg['fused'] = 1
    g = G(cfg)
    names = g.build_split() if mode == 'split' else g.build_fused()
    open(sys.argv[2], 'w').write(g.finish(names))
```

```python
import sys
from asmlib import *
NAME = "parallel_sum__ssm_conv_s4__dense_activation_squared_relu__prompt"
WS_H, WS_XT, WS_YT, WS_FL, WS_ST, WS_SZ = 0, 0x700000, 0x900000, 0xB00000, 0xB80000, 0xC00000
WS_RS, WS_CS = 0xB10000, 0xB20000
FL_H, FL_Y = WS_FL, WS_FL + 4096
SX, SW1, SW2, SWS, SOUT, SDBG = 4, 8, 12, 16, 20, 24
sW, sXC, sJ = 28, 29, 30
sT0, sT1, sT2, sT3, sT4 = 31, 32, 33, 34, 35
P = lambda i: 36 + 2 * i
sRB, sCB, sA, sB, sC, sD, sE, sF = 70, 71, 72, 73, 74, 75, 76, 77
sPAIR, sRT, sDB = 78, 79, 80
sSTAMP = 82
vTid, vLane, vL15, vG, vR, vC, vL16 = 0, 1, 2, 3, 4, 5, 6
VBASE = 8
L_KX = 131072
L_BN = L_KX + 9216
L_W2 = 0
NSLOT = 3
L_XC = 49152
L_RED = 98304
L_RED2 = L_XC
LDS_BYTES = 163840
assert L_BN + 18432 <= LDS_BYTES and L_RED + 32768 <= L_KX
ONE2 = 0x3F803F80

class G:
    def __init__(self, cfg):
        self.a = Asm(); self.cfg = cfg; self.nst = 0
        self.sc = ' sc1' if cfg.get('fused') else ''
    def stamp(self, lvl=1):
        if self.cfg.get('prof', 0) & lvl:
            self.a(('s_memtime %s ; s_memrealtime' if self.cfg.get('cyc') else 's_memrealtime %s') % sr(sSTAMP + 2 * self.nst, 2)); self.nst += 1
    def write_stamps(self, slot):
        if not self.cfg.get('prof'): return
        a = self.a
        a.drain()
        a('s_lshl_b32 s%d, s2, 8\ns_lshl_b32 s%d, s%d, 6\ns_add_u32 s%d, s%d, s%d' % (sT0, sT1, sW, sT0, sT0, sT1))
        a('s_add_u32 s%d, s%d, %d' % (sT0, sT0, WS_ST + slot * 65536))
        a('v_mov_b32 v10, 0')
        for i in range(self.nst):
            a('v_mov_b32 v11, s%d' % (sSTAMP + 2 * i))
            a('buffer_store_dword v11, v10, %s, s%d offen offset:%d' % (sr(SWS, 4), sT0, 4 * i))
        self.nst = 0

    def header(self, kname):
        a = self.a
        a.raw('.globl %s\n.p2align 8\n.type %s,@function\n%s:' % (kname, kname, kname))
        a.hist = []; a.vm = []; a.lg = []
        self.endl = a.newlabel('END')
        a('s_cmp_ge_u32 s2, 256\ns_cbranch_scc1 %s' % self.endl)
        a('s_load_dwordx16 s[36:51], s[0:1], 0\ns_load_dwordx16 s[52:67], s[0:1], 64\ns_load_dwordx2 s[68:69], s[0:1], 128')
        self.stamp(7)
        a('v_lshrrev_b32 v7, 6, v0\nv_and_b32 v%d, 63, v0\nv_and_b32 v%d, 15, v0' % (vLane, vL15))
        a('v_readfirstlane_b32 s%d, v7' % sW)
        a('v_lshrrev_b32 v%d, 4, v%d\nv_bfe_u32 v%d, v0, 2, 2\nv_and_b32 v%d, 3, v0\nv_lshlrev_b32 v%d, 4, v%d' % (vG, vLane, vR, vC, vL16, vLane))
        a('s_and_b32 s%d, s2, 7\ns_lshr_b32 s%d, s2, 3' % (sXC, sJ))
        a('s_lshl_b32 s%d, s%d, 5\ns_add_u32 s%d, s%d, s%d' % (sPAIR, sXC, sPAIR, sPAIR, sJ))
        a('s_and_b32 s%d, s%d, 3\ns_lshl_b32 s%d, s%d, 2\ns_add_u32 s%d, s%d, s%d\ns_lshr_b32 s%d, s%d, 2' % (sT0, sJ, sRT, sXC, sRT, sRT, sT0, sDB, sJ))
        for srd, n in ((SX, 2097152), (SW1, 1835008), (SW2, 1835008), (SWS, WS_SZ), (SOUT, 2097152), (SDBG, 256)):
            a('s_mov_b32 s%d, 0x%x\ns_mov_b32 s%d, 0x20000' % (srd + 2, n, srd + 3))
        a.wait(lg='all')
        for srd, p in ((SX, 0), (SW1, 10), (SW2, 12), (SWS, 16), (SOUT, 14), (SDBG, 15)):
            a('s_mov_b32 s%d, s%d\ns_and_b32 s%d, s%d, 0xffff' % (srd, P(p), srd + 1, P(p) + 1))
    def footer(self, kname):
        a = self.a
        a.label(self.endl); a('s_endpgm')
    def kd(self, kname):
        return ('.p2align 6\n.amdhsa_kernel %s\n  .amdhsa_next_free_vgpr 512\n  .amdhsa_next_free_sgpr 102\n  .amdhsa_accum_offset 256\n'
                '  .amdhsa_group_segment_fixed_size 0\n  .amdhsa_kernarg_size 136\n  .amdhsa_user_sgpr_count 2\n'
                '  .amdhsa_user_sgpr_kernarg_segment_ptr 1\n  .amdhsa_system_sgpr_workgroup_id_x 1\n.end_amdhsa_kernel\n' % kname)

    def stats(self, S1, S2, m, s, r, t):
        a = self.a
        a('v_mul_f32 v%d, 0x3b000000, v%d' % (m, S1))
        a('v_mul_f32 v%d, v%d, v%d' % (t, m, m))
        a('v_mul_f32 v%d, 0x3b000000, v%d' % (s, S2))
        a('v_sub_f32 v%d, v%d, v%d' % (s, s, t))
        a('v_max_f32 v%d, 0, v%d' % (s, s))
        a('v_cvt_pk_bf16_f32 v%d, v%d, v%d' % (t, m, s))
        a('v_lshlrev_b32 v%d, 16, v%d' % (m, t))
        a('v_and_b32 v%d, 0xffff0000, v%d' % (s, t))
        a('v_add_f32 v%d, 0x3727c5ac, v%d' % (s, s))
        a('v_cvt_pk_bf16_f32 v%d, v%d, v%d' % (s, s, s))
        a('v_lshlrev_b32 v%d, 16, v%d' % (s, s))
        a('v_sqrt_f32 v%d, v%d' % (s, s))
        a('v_cvt_pk_bf16_f32 v%d, v%d, v%d' % (s, s, s))
        a('v_lshlrev_b32 v%d, 16, v%d' % (s, s))
        a('v_rcp_f32 v%d, v%d' % (r, s))

    def poll(self, voff, srd, soff, t, first=None):
        a = self.a
        ld = 'buffer_load_dword v%d, v%d, %s, %s offen sc1' % (t, voff, sr(srd, 4), soff)
        if first is None:
            a(ld, tag='poll'); first = 'poll'
        a.wait(vm=first)
        lp, ok = a.newlabel('POLL'), a.newlabel('OK')
        a('v_cmp_ne_u32 vcc, 1, v%d\ns_mov_b32 s81, 0x10000\ns_cbranch_vccz %s' % (t, ok))
        a.label(lp)
        a.raw('    s_sub_u32 s81, s81, 1\n    s_cbranch_scc1 %s\n    s_sleep 1\n    %s\n    s_waitcnt vmcnt(0)\n    v_cmp_ne_u32 vcc, 1, v%d\n    s_nop 1\n    s_cbranch_vccnz %s' % (ok, ld, t, lp))
        a.label(ok)
    def xpoll_issue(self, V):
        a = self.a
        self.xp = V.get(2)
        a('v_and_b32 v%d, 31, v0\nv_lshlrev_b32 v%d, 2, v%d' % (self.xp, self.xp, self.xp))
        a('buffer_load_dword v%d, v%d, %s, 0 offen sc1' % (self.xp + 1, self.xp, sr(SDBG, 4)), tag='xp')
    def xpoll_check(self, V):
        self.poll(self.xp, SDBG, '0', self.xp + 1, first='xp'); V.put(self.xp, 2)
    def flag(self, srd, soff, V):
        a = self.a; t = V.get(2)
        a('v_mov_b32 v%d, 0\nv_mov_b32 v%d, 1\ns_mov_b64 exec, 1' % (t, t + 1))
        a('buffer_store_dword v%d, v%d, %s, s%d offen sc1\ns_mov_b64 exec, -1' % (t + 1, t, sr(srd, 4), soff), tag='flag')
        V.put(t, 2)

    def gemm1(self, V):
        a = self.a; fused = self.cfg.get('fused')
        a('s_and_b32 s%d, s%d, 3\ns_lshl_b32 s%d, s%d, 2\ns_and_b32 s%d, s%d, 3\ns_add_u32 s%d, s%d, s%d' % (sT0, sXC, sT0, sT0, sT1, sJ, sRB, sT0, sT1))
        a('s_lshr_b32 s%d, s%d, 2\ns_mul_i32 s%d, s%d, 7\ns_add_u32 s%d, s%d, s%d' % (sT0, sXC, sT0, sT0, sCB, sT0, sDB))
        vW, vX, t0, t1 = V.get(4), V.get(4), V.get(), V.get()
        a('s_mul_i32 s%d, s%d, %d\ns_lshl_b32 s%d, s%d, 8\ns_add_u32 s%d, s%d, s%d' % (sT0, sW, 16 * 3584, sT1, sCB, sA, sT0, sT1))
        a('v_lshlrev_b32 v%d, 1, v%d\nv_xor_b32 v%d, v%d, v%d\nv_mul_u32_u24 v%d, 3584, v%d\nv_lshl_add_u32 v%d, v%d, 4, v%d' % (t0, vG, t0, t0, vL15, t1, vG, vW, t0, t1))
        a('v_xor_b32 v%d, 8, v%d\nv_lshl_add_u32 v%d, v%d, 4, v%d' % (t0, t0, vW + 2, t0, t1))
        a('v_add_u32 v%d, %d, v%d\nv_add_u32 v%d, %d, v%d\nv_add_u32 v%d, %d, v%d' % (vW + 1, 13312, vW, vW + 3, 3 * 13312, vW + 2, vW + 2, 2 * 13312, vW + 2))
        a('s_lshl_b32 s%d, s%d, 17\ns_lshl_b32 s%d, s%d, 15\ns_add_u32 s%d, s%d, s%d' % (sB, sRB, sT0, sW, sB, sB, sT0))
        a('v_lshrrev_b32 v%d, 3, v%d\nv_lshlrev_b32 v%d, 10, v%d\nv_and_b32 v%d, 7, v0\nv_xor_b32 v%d, v%d, v%d\nv_lshl_add_u32 v%d, v%d, 4, v%d' % (t1, vLane, t1, t1, t0, t0, t0, vG, vX, t0, t1))
        a('v_xor_b32 v%d, 64, v%d' % (vX + 1, vX))
        a('v_add_u32 v%d, %d, v%d\nv_add_u32 v%d, %d, v%d\nv_add_u32 v%d, %d, v%d' % (vX + 2, 2 * 7168, vX, vX + 3, 3 * 7168, vX + 1, vX + 1, 7168, vX + 1))
        a('s_lshl_b32 s%d, s%d, 12' % (sC, sW))
        def loads(c):
            o = (c % 4) * 32768; r = []
            for i in range(4):
                r.append(lambda i=i: a(('s_add_u32 m0, s%d, %d\n' % (sC, o + 16384) if i == 0 else '') +
                         'buffer_load_dwordx4 v%d, %s, s%d offen offset:%d lds' % (vX + i, sr(SX, 4), sB, 1024 * i) +
                         ('\ns_add_u32 s%d, s%d, 128' % (sB, sB) if i == 3 else ''), tag=('c', c)))
            for i in range(4):
                r.append(lambda i=i: a(('s_add_u32 m0, s%d, %d\n' % (sC, o) if i == 0 else '') +
                         'buffer_load_dwordx4 v%d, %s, s%d offen offset:%d lds' % (vW + i, sr(SW1, 4), sA, 1024 * i) +
                         ('\ns_add_u32 s%d, s%d, %d' % (sA, sA, 64 * 3584) if i == 3 else ''), tag=('c', c)))
            return r
        pre = [f for c in range(4) for f in loads(c)]
        npre = self.cfg.get('npre', 32)
        for f in pre[:npre]: f()
        pre = pre[npre:]
        self.stamp()
        if fused:
            def hook():
                for _ in range(4):
                    if pre: pre.pop(0)()
            self.kgen(V, hook)
        while pre: pre.pop(0)()
        vT, vB = V.get(4), V.get(2)
        a('v_lshl_add_u32 v%d, v%d, 3, v%d\nv_lshlrev_b32 v%d, 8, v%d\nv_lshl_add_u32 v%d, v%d, 3, v%d' % (t0, vG, vR, t0, t0, t0, vC, t0))
        a('v_and_b32 v%d, 1, v%d\nv_lshl_add_u32 v%d, v%d, 2, v%d' % (t1, vG, t1, t1, vR))
        a('s_and_b32 s%d, s%d, 2\ns_lshl_b32 s%d, s%d, 1\nv_xor_b32 v%d, s%d, v%d' % (sT0, sW, sT0, sT0, t1, sT0, t1))
        for j in range(4): a('v_xor_b32 v%d, %d, v%d\nv_lshl_add_u32 v%d, v%d, 5, v%d' % (vT + j, j, t1, vT + j, vT + j, t0))
        a('s_and_b32 s%d, s%d, 1\ns_lshl_b32 s%d, s%d, 13\ns_add_u32 s%d, s%d, 16384' % (sT0, sW, sT0, sT0, sT0, sT0))
        a('v_lshrrev_b32 v%d, 1, v%d\nv_xor_b32 v%d, v%d, v%d\nv_lshlrev_b32 v%d, 4, v%d\nv_lshl_add_u32 v%d, v%d, 7, v%d\nv_add_u32 v%d, s%d, v%d\nv_xor_b32 v%d, 64, v%d' %
          (t0, vL15, t0, t0, vG, t0, t0, t0, vL15, t0, vB, sT0, t0, vB + 1, vB))
        acc = V.get(64, 4); fb = V.get(64, 4)
        def reads(ks):
            c, kp = divmod(ks, 2); o = (c % 2) * 32768; b = fb + 32 * (ks & 1); r = []
            if ks and ks % 4 == 0:
                r.append(lambda: a('\n'.join('v_xor_b32 v%d, 0x10000, v%d' % (x, x) for x in (vT, vT + 1, vT + 2, vT + 3, vB, vB + 1))))
            for j in range(4):
                r.append(lambda j=j: a('ds_read_b128 %s, v%d offset:%d' % (vr(b + 16 + 4 * j, 4), vB + kp, o + 2048 * j), tag=('f', ks)))
                for h in range(2):
                    r.append(lambda j=j, h=h: a('ds_read_b64_tr_b16 %s, v%d offset:%d' % (vr(b + 4 * j + 2 * h, 2), vT + j, o + kp * 8192 + 1024 * h), tag=('f', ks)))
            return r
        a.wait(vm=('c', 0), lg='all'); a('s_barrier'); self.stamp(2)
        for f in reads(0): f()
        if fused: self.kgen2(V)
        self.stamp()
        mf = 'v_mfma_f32_16x16x32_bf16 %s, %s, %s, %s'
        st = V.get(16, 4); cf = V.get(8, 2)
        def corr_loads():
            a('s_lshl_b32 s%d, s%d, 11\ns_and_b32 s%d, s%d, 1\ns_lshl_b32 s%d, s%d, 10\ns_add_u32 s%d, s%d, s%d\ns_add_u32 s%d, s%d, 0x%x' % (sT0, sRB, sT1, sW, sT1, sT1, sT0, sT0, sT1, sT0, sT0, WS_RS))
            a('v_lshlrev_b32 v%d, 4, v%d' % (t0, vL15))
            for j in range(4): a('buffer_load_dwordx4 %s, v%d, %s, s%d offen offset:%d%s' % (vr(st + 4 * j, 4), t0, sr(SWS, 4), sT0, 256 * j, self.sc), tag='corr')
            a('s_lshl_b32 s%d, s%d, 10\ns_and_b32 s%d, s%d, 2\ns_lshl_b32 s%d, s%d, 8\ns_add_u32 s%d, s%d, s%d\ns_add_u32 s%d, s%d, 0x%x' % (sT0, sCB, sT1, sW, sT1, sT1, sT0, sT0, sT1, sT0, sT0, WS_CS))
            a('v_lshlrev_b32 v%d, 28, v%d\nv_lshl_add_u32 v%d, v%d, 3, v%d' % (t1, vG, t1, vL15, t1))
            for j in range(4): a('buffer_load_dwordx2 %s, v%d, %s, s%d offen offset:%d%s' % (vr(cf + 2 * j, 2), t1, sr(SWS, 4), sT0, 128 * j, self.sc), tag='corr')
        dma = []
        for ks in range(16):
            c = ks // 2; pend = []
            a.wait(lg=('f', ks))
            if ks & 1 and c < 7:
                a.wait(vm=('c', c + 1))
                if c == 5:
                    if fused: self.xpoll_check(V)
                    corr_loads()
                    if fused: self.xt_load(V)
                a('s_barrier'); self.stamp(2)
            if ks == 15 and fused:
                a('s_barrier'); self.w2_start()
            if ks < 15: pend += reads(ks + 1)
            if ks & 1 and c + 4 < 8:
                if c == 3 and fused: dma.append(lambda: self.xpoll_issue(V))
                dma += loads(c + 4)
            b = fb + 32 * (ks & 1)
            for m in range(16):
                jf, jt = divmod(m, 4); r = acc + 16 * jt + 4 * jf
                a(mf % (vr(r, 4), vr(b + 4 * jf, 4), vr(b + 16 + 4 * jt, 4), vr(r, 4) if ks else '0'))
                k = -(-len(pend) // (16 - m))
                for _ in range(max(k, 1) if pend else 0): pend.pop(0)()
                if dma and (m % 4 == 3 or (m == 13 and len(dma) > 5 - 4 * (1 - (ks & 1)))): dma.pop(0)()
        self.stamp(3)
        a.wait(vm='corr')
        for jt in range(4):
            for jf in range(4):
                r = acc + 16 * jt + 4 * jf
                a('v_mfma_f32_16x16x16_bf16 %s, %s, %s, %s' % (vr(r, 4), vr(cf + 2 * jf, 2), vr(st + 4 * jt, 2), vr(r, 4)))
        a('s_lshl_b32 s%d, s%d, 1\ns_and_b32 s%d, s%d, 1\ns_add_u32 s%d, s%d, s%d\ns_mul_i32 s%d, s%d, %d' % (sT0, sRB, sT1, sW, sT2, sT0, sT1, sT0, sT2, 4 * 56 * 1024))
        a('s_lshl_b32 s%d, s%d, 2\ns_and_b32 s%d, s%d, 2\ns_add_u32 s%d, s%d, s%d\ns_lshl_b32 s%d, s%d, 10\ns_add_u32 s%d, s%d, s%d' % (sT1, sCB, sT3, sW, sT3, sT1, sT3, sT1, sT3, sT0, sT0, sT1))
        a('s_lshl_b32 s%d, s%d, 7\ns_lshl_b32 s%d, s%d, 1\ns_add_u32 s%d, s%d, s%d\ns_add_u32 s%d, s%d, 0x%x' % (sT2, sT2, sT3, sT3, sRB, sT2, sT3, sRB, sRB, FL_H))
        ob = fb
        for jt in range(4):
            for J in range(2):
                o = ob + 8 * jt + 4 * J
                for e in range(2):
                    r = acc + 16 * jt + 4 * (2 * J + e)
                    for hh in range(2):
                        a('v_pk_mul_f32 %s, %s, %s op_sel_hi:[1,0]' % (vr(r + 2 * hh, 2), vr(r + 2 * hh, 2), vr(st + 4 * jt + 2, 2)))
                    for i in range(4): a('v_max_f32 v%d, 0, v%d' % (r + i, r + i))
                    for hh in range(2):
                        a('v_pk_mul_f32 %s, %s, %s' % (vr(r + 2 * hh, 2), vr(r + 2 * hh, 2), vr(r + 2 * hh, 2)))
                    for hh in range(2):
                        a('v_cvt_pk_bf16_f32 v%d, v%d, v%d' % (o + 2 * e + hh, r + 2 * hh, r + 2 * hh + 1))
                a('buffer_store_dwordx4 %s, v%d, %s, s%d offen offset:%d%s' % (vr(o, 4), vL16, sr(SWS, 4), sT0, 1024 * J, self.sc), tag='pub')
            if jt < 3: a('s_add_u32 s%d, s%d, %d' % (sT0, sT0, 56 * 1024))
        for r, n in ((vW, 4), (vX, 4), (t0, 1), (t1, 1), (vT, 4), (vB, 2), (acc, 64), (fb, 64), (st, 16), (cf, 8)): V.put(r, n)
        self.stamp()

    def helper(self, V):
        a = self.a; fused = self.cfg.get('fused')
        XS = 1056; LW = 4 * 16 * XS
        assert LW + 65536 <= LDS_BYTES
        a('s_and_b32 s%d, s%d, 3\ns_lshl_b32 s%d, s%d, 3\ns_and_b32 s%d, s%d, 4\ns_add_u32 s%d, s%d, s%d\ns_add_u32 s%d, s%d, s%d\ns_sub_u32 s%d, s%d, 28' %
          (sT0, sXC, sT0, sT0, sT1, sXC, sT0, sT0, sT1, sT0, sT0, sJ, sRB, sT0))
        a('s_lshl_b32 s%d, s%d, 2\ns_add_u32 s%d, s%d, s%d\ns_lshl_b32 s%d, s%d, 14\ns_mov_b32 s%d, s%d' % (sCB, sRB, sCB, sCB, sW, sA, sCB, sB, sA))
        a('s_mul_i32 s%d, s%d, %d' % (sC, sW, 16 * XS))
        for i in range(16):
            a('s_add_u32 m0, s%d, %d\nbuffer_load_dwordx4 v%d, %s, s%d offen lds\ns_add_u32 s%d, s%d, 1024' % (sC, i * XS, vL16, sr(SX, 4), sB, sB, sB), tag='x')
        t0, t1, vW, vb1 = V.get(), V.get(), V.get(4), V.get()
        a('s_min_u32 s%d, s%d, 27\ns_lshl_b32 s%d, s%d, 7\ns_mul_i32 s%d, s%d, %d\ns_add_u32 s%d, s%d, s%d' % (sE, sRB, sE, sE, sT0, sW, 128 * 3584, sB, sT0, sE))
        a('v_lshrrev_b32 v%d, 3, v%d\nv_mul_u32_u24 v%d, 3584, v%d\nv_lshlrev_b32 v%d, 1, v%d\nv_and_b32 v%d, 7, v0\nv_xor_b32 v%d, v%d, v%d\nv_lshl_add_u32 v%d, v%d, 4, v%d' %
          (t0, vLane, t0, t0, t1, vG, vW, t1, t1, vW, vW, t1, t0))
        for i in range(1, 4): a('v_add_u32 v%d, %d, v%d' % (vW + i, (8 * 3584 - 1024) * i, vW))
        a('s_lshl_b32 s%d, s%d, 14' % (sD, sW))
        for k in range(4):
            a('s_add_u32 m0, s%d, %d' % (sD, LW + 4096 * k))
            for i in range(4): a('buffer_load_dwordx4 v%d, %s, s%d offen offset:%d lds' % (vW + i, sr(SW1, 4), sB, 1024 * i), tag='w')
            a('s_add_u32 s%d, s%d, %d' % (sB, sB, 32 * 3584))
        a('s_lshl_b32 s%d, s%d, 5\ns_add_u32 s%d, s%d, s%d\nv_lshl_add_u32 v%d, v%d, 1, s%d' % (sT0, sW, sE, sE, sT0, t0, vL15, sE))
        a('global_load_ushort v%d, v%d, %s' % (vb1, t0, sr(P(11), 2)), tag='w')
        if fused:
            a('s_lshl_b32 s%d, s%d, 8\ns_add_u32 s%d, s%d, 0x%x\nv_lshlrev_b32 v%d, 2, v%d\nv_mov_b32 v%d, 0' % (sT0, sRB, sT0, sT0, WS_FL, t0, vLane, t1))
            a('buffer_store_dword v%d, v%d, %s, s%d offen sc1' % (t1, t0, sr(SWS, 4), sT0), tag='z')
        ones = V.get(4, 4); sel = V.get(8, 4); ra = V.get(); t2 = V.get()
        for i in range(4): a('v_mov_b32 v%d, 0x%x' % (ones + i, ONE2))
        a('v_lshlrev_b32 v%d, 2, v%d\nv_sub_u32 v%d, v%d, v%d\nv_mov_b32 v%d, 0x3f80' % (ra, vG, ra, vL15, ra, t2))
        for i in range(4):
            a('v_cmp_eq_u32 vcc, %d, v%d\nv_cndmask_b32 v%d, 0, v%d, vcc\nv_lshlrev_b32 v%d, 16, v%d' % (i, ra, sel + i, t2, sel + 4 + i, sel + i))
        a('v_mul_u32_u24 v%d, %d, v%d\nv_lshl_add_u32 v%d, v%d, 4, v%d\nv_add_u32 v%d, s%d, v%d' % (ra, XS, vL15, ra, vG, ra, ra, sC, ra))
        ssum, ssq = V.get(4, 4), V.get(4, 4)
        mf = 'v_mfma_f32_16x16x32_bf16 %s, %s, %s, %s'
        self.stamp()
        a.wait(vm='x')
        for ks in range(16): a('ds_read_b128 %s, v%d offset:%d' % (ar(ks * 4, 4), ra, 64 * ks), tag=('x', ks))
        for ks in range(16):
            a.wait(lg=('x', ks))
            a(mf % (vr(ssum, 4), ar(ks * 4, 4), vr(ones, 4), vr(ssum, 4) if ks else '0'))
            a(mf % (vr(ssq, 4), ar(ks * 4, 4), ar(ks * 4, 4), vr(ssq, 4) if ks else '0'))
        a('v_mul_u32_u24 v%d, 80, v%d' % (t2, vG))
        for i in range(4): a('ds_bpermute_b32 v%d, v%d, v%d offset:%d' % (ssq + i, t2, ssq + i, 4 * i))
        a.wait(lg='all')
        nm, rr, sq = V.get(4, 4), V.get(4, 4), V.get(16, 4)
        for i in range(4):
            self.stats(ssum + i, ssq + i, nm + i, sq + 4 * i + 1, rr + i, t2)
            a('v_sub_f32 v%d, 0, v%d' % (nm + i, nm + i))
        dd = V.get(128, 4)
        for ks in range(16):
            for e in range(2): a(mf % (vr(dd + 8 * ks + 4 * e, 4), ar(ks * 4, 4), vr(sel + 4 * e, 4), vr(nm, 4)))
        for i in range(4):
            q = sq + 4 * i
            a('v_cvt_pk_bf16_f32 v%d, v%d, v%d\nv_lshrrev_b32 v%d, 16, v%d\nv_mov_b32 v%d, v%d\nv_mov_b32 v%d, 0' % (q, nm + i, nm + i, q + 1, q + 1, q + 2, rr + i, q + 3))
        a('s_lshl_b32 s%d, s%d, 8\ns_add_u32 s%d, s%d, 0x%x\nv_lshlrev_b32 v%d, 6, v%d\nv_lshl_add_u32 v%d, v%d, 28, v%d' % (sT0, sCB, sT0, sT0, WS_RS, t2, vG, t2, vL15, t2))
        for i in range(4): a('buffer_store_dwordx4 %s, v%d, %s, s%d offen offset:%d%s' % (vr(sq + 4 * i, 4), t2, sr(SWS, 4), sT0, 16 * i, self.sc), tag='pub')
        wa = V.get()
        a('v_bfe_u32 v%d, v0, 1, 2\nv_xor_b32 v%d, v%d, v%d\nv_lshlrev_b32 v%d, 4, v%d\nv_lshl_add_u32 v%d, v%d, 6, v%d\nv_add_u32 v%d, s%d, v%d' % (wa, wa, wa, vG, wa, wa, wa, vL15, wa, wa, sC, wa))
        a('v_bfe_u32 v%d, v0, 3, 2\nv_lshlrev_b32 v%d, 4, v%d\nv_xor_b32 v%d, v%d, v%d\nv_add_u32 v%d, s%d, v%d' % (ra, ra, ra, ra, ra, vL16, ra, sC, ra))
        a('s_add_u32 s%d, s%d, 0x%x' % (sA, sA, WS_XT))
        def fin(ks):
            a.wait(lg=('b', ks))
            if ks and ks % 4 == 0: a('s_add_u32 s%d, s%d, 4096' % (sA, sA))
            a('buffer_store_dwordx4 %s, v%d, %s, s%d offen offset:%d%s' % (vr(dd + 8 * ks + 4, 4), vL16, sr(SWS, 4), sA, (ks % 4) * 1024, self.sc), tag='pub')
        for ks in range(16):
            d = dd + 8 * ks
            for hh in range(4): a('v_pk_mul_f32 %s, %s, %s' % (vr(d + 2 * hh, 2), vr(d + 2 * hh, 2), vr(rr + 2 * (hh & 1), 2)))
            for hh in range(4): a('v_cvt_pk_bf16_f32 v%d, v%d, v%d' % (d + hh, d + 2 * hh, d + 2 * hh + 1))
            a('ds_write_b128 v%d, %s offset:%d' % (wa, vr(d, 4), 1024 * ks), tag=('b', ks))
            a('ds_read_b128 %s, v%d offset:%d' % (vr(d + 4, 4), ra, 1024 * ks), tag=('b', ks))
            if ks >= 3: fin(ks - 3)
        for ks in range(13, 16): fin(ks)
        self.stamp()
        a('v_lshl_add_u32 v%d, v%d, 2, v%d\nv_bfe_u32 v%d, v%d, 1, 2\nv_xor_b32 v%d, s%d, v%d\nv_lshlrev_b32 v%d, 5, v%d\nv_lshl_add_u32 v%d, v%d, 7, v%d\nv_lshl_add_u32 v%d, v%d, 3, v%d\nv_add_u32 v%d, %d, v%d' %
          (t0, vG, vR, t1, t0, t1, sW, t1, t1, t1, t0, t0, t1, t0, vC, t0, t0, LW, t0))
        a.wait(vm='w'); a('s_barrier')
        for ks in range(16):
            for h in range(2): a('ds_read_b64_tr_b16 %s, v%d offset:%d' % (ar(ks * 4 + 2 * h, 2), t0, 4096 * ks + 2048 * h), tag=('w', ks))
            if ks >= 4:
                a.wait(lg=('w', ks - 4)); a(mf % (vr(ssum, 4), vr(ones, 4), ar((ks - 4) * 4, 4), vr(ssum, 4) if ks > 4 else '0'))
        for ks in range(12, 16):
            a.wait(lg=('w', ks)); a(mf % (vr(ssum, 4), vr(ones, 4), ar(ks * 4, 4), vr(ssum, 4)))
        q = ssq
        a('s_lshl_b32 s%d, s%d, 2\ns_add_u32 s%d, s%d, 0x%x\nv_lshlrev_b32 v%d, 28, v%d\nv_lshl_add_u32 v%d, v%d, 3, v%d' % (sT0, sE, sT0, sT0, WS_CS, t1, vG, t1, vL15, t1))
        a('v_cvt_pk_bf16_f32 v%d, v%d, v%d\nv_lshlrev_b32 v%d, 16, v%d\nv_sub_f32 v%d, v%d, v%d\nv_cvt_pk_bf16_f32 v%d, v%d, v%d\nv_mov_b32 v%d, v%d' % (q, ssum, ssum, q, q, t0, ssum, q, q, q, t0, q + 1, vb1))
        a('buffer_store_dwordx2 %s, v%d, %s, s%d offen%s' % (vr(q, 2), t1, sr(SWS, 4), sT0, self.sc), tag='pub')
        for r, n in ((t0, 1), (t1, 1), (vW, 4), (vb1, 1), (ones, 4), (sel, 8), (ra, 1), (t2, 1), (ssum, 4), (ssq, 4), (nm, 4), (rr, 4), (sq, 16), (dd, 128), (wa, 1)): V.put(r, n)
        self.stamp()

    def kgen_load(self, V):
        a = self.a
        self.kp = V.get(6); t0 = V.get()
        a('s_lshl_b32 s%d, s%d, 9\ns_lshl_b32 s%d, s%d, 7\ns_add_u32 s%d, s%d, s%d\nv_lshl_add_u32 v%d, v%d, 1, s%d' % (sT0, sPAIR, sT1, sW, sT0, sT0, sT1, t0, vLane, sT0))
        self.kq = V.get(2); t1 = V.get()
        a('s_lshl_b32 s%d, s%d, 2\ns_and_b32 s%d, s%d, 2\ns_add_u32 s%d, s%d, s%d\nv_mov_b32 v%d, s%d' % (sT0, sPAIR, sT1, sW, sT0, sT0, sT1, t1, sT0))
        for i in range(2): a('global_load_ushort v%d, v%d, %s' % (self.kq + i, t1, sr(P(7 + i), 2)), tag='kp')
        for i in range(6): a('global_load_ushort v%d, v%d, %s' % (self.kp + i, t0, sr(P(1 + i), 2)), tag='kp')
        V.put(t0); V.put(t1)

    def kgen(self, V, hook=lambda: None):
        a = self.a; kp, kq = self.kp, self.kq
        t = V.get(4, 2); wa = V.get(); ra = V.get()
        a('s_mul_i32 s%d, s%d, 4608\ns_add_u32 s%d, s%d, %d\nv_lshl_add_u32 v%d, v%d, 2, s%d' % (sT4, sW, sT4, sT4, L_BN, wa, vLane, sT4))
        a('v_mul_u32_u24 v%d, 288, v%d\nv_lshl_add_u32 v%d, v%d, 4, v%d\nv_add_u32 v%d, s%d, v%d' % (ra, vL15, ra, vG, ra, ra, sT4, ra))
        a('s_mov_b32 s%d, 0x3fb8aa3b\ns_mov_b32 s%d, 0x32a57060' % (sT0, sT1))
        a.wait(vm='kp')
        for i in range(2): a('v_lshlrev_b32 v%d, 16, v%d' % (kq + i, kq + i))
        a('v_mul_f32 v%d, s%d, v%d\nv_fma_f32 v%d, v%d, s%d, -v%d\nv_exp_f32 v%d, v%d\nv_fma_f32 v%d, v%d, s%d, v%d' % (t, sT0, kq, t + 1, kq, sT0, t, t, t, t + 1, kq, sT1, t + 1))
        for i in range(6): a('v_lshlrev_b32 v%d, 16, v%d' % (kp + i, kp + i))
        a('v_mul_f32 v%d, 0x3f317218, v%d\nv_fma_f32 v%d, v%d, v%d, v%d' % (t + 1, t + 1, t, t, t + 1, t))
        a('v_cvt_pk_bf16_f32 v%d, v%d, v%d\nv_lshlrev_b32 v%d, 16, v%d' % (t, t, t, kq, t))
        a('v_pk_mul_f32 %s, %s, %s op_sel_hi:[1,0]\nv_pk_mul_f32 %s, %s, %s op_sel_hi:[1,0]' % (vr(kp, 2), vr(kp, 2), vr(kq, 2), vr(kp + 2, 2), vr(kp + 2, 2), vr(kq, 2)))
        a('v_mul_f32 v%d, s%d, v%d\nv_mul_f32 v%d, 0.15915494, v%d' % (kp, sT0, kp, kp + 1, kp + 1))
        R = {}
        def new(n): R[n] = V.get(2); return R[n]
        tmp = [V.get(2) for _ in range(4)]; pk = [V.get() for _ in range(4)]; cnt = [0]
        names = ['w1', 'w8', 'Q1']; fl = ['1.0', '0x41000000', '0x43800000']
        for i in range(3): new(names[i]); a('v_mul_f32 v%d, %s, v%d\nv_mul_f32 v%d, %s, v%d' % (tmp[i], fl[i], kp, tmp[i] + 1, fl[i], kp + 1))
        for i in range(3): a('v_fract_f32 v%d, v%d\nv_exp_f32 v%d, v%d' % (tmp[i] + 1, tmp[i] + 1, tmp[i], tmp[i]))
        for i in range(3): a('v_cos_f32 v%d, v%d\nv_sin_f32 v%d, v%d' % (R[names[i]], tmp[i] + 1, R[names[i]] + 1, tmp[i] + 1))
        for i in range(3): a('v_pk_mul_f32 %s, %s, %s op_sel_hi:[1,0]' % (vr(R[names[i]], 2), vr(R[names[i]], 2), vr(tmp[i], 2)))
        def emit(group):
            for i, (z, x, y, row, neg) in enumerate(group):
                if x is not None: a('v_pk_mul_f32 %s, %s, %s op_sel_hi:[0,1]' % (vr(tmp[i], 2), vr(x, 2), vr(y, 2)))
            for i, (z, x, y, row, neg) in enumerate(group):
                if x is not None: a('v_pk_fma_f32 %s, %s, %s, %s op_sel:[1,1,0] op_sel_hi:[1,0,1] neg_lo:[0,1,0]' % (vr(z, 2), vr(x, 2), vr(y, 2), vr(tmp[i], 2)))
            for i, (z, x, y, row, neg) in enumerate(group):
                if row is not None: a('v_cvt_pk_bf16_f32 v%d, v%d, %sv%d' % (pk[i], z, '-' if neg else '', z + 1))
            for i, (z, x, y, row, neg) in enumerate(group):
                if row is not None: a('ds_write_b32 v%d, v%d offset:%d' % (wa, pk[i], row * 288), tag='tab')
            cnt[0] += 1
            if cnt[0] % 3 == 0: hook()
        fr = V.get(64, 4)
        def rdtile(k):
            for ks in range(4): a('ds_read_b128 %s, v%d offset:%d' % (vr(fr + 16 * k + 4 * ks, 4), ra, 64 * ks), tag=('kt', k))
        sc = [new('s%d' % i) for i in range(4)]
        U = [new('U%d' % i) for i in range(4)]
        N = None
        a('v_mov_b32 v%d, 0x3f80\nds_write_b32 v%d, v%d' % (t + 2, wa, t + 2), tag='tab')
        emit([(new('w2'), R['w1'], R['w1'], 2, 0), (new('Q2'), R['Q1'], R['Q1'], 8, 0), (R['w1'], N, N, 1, 0), (R['Q1'], N, N, 4, 0)])
        emit([(new('w4'), R['w2'], R['w2'], N, 0), (new('Q4'), R['Q2'], R['Q2'], 12, 0), (new('w3'), R['w2'], R['w1'], 3, 0), (sc[0], R['Q1'], R['w2'], 5, 0)])
        emit([(new('w6'), R['w4'], R['w2'], N, 0), (new('Q5'), R['Q4'], R['Q1'], 14, 0), (sc[0], R['Q1'], R['w4'], 6, 0), (sc[1], R['Q2'], R['w4'], 9, 0)])
        emit([(sc[0], R['Q1'], R['w6'], 7, 0), (sc[1], R['Q2'], R['w8'], 10, 0), (sc[2], R['Q4'], R['w8'], 13, 0), (sc[3], R['Q5'], R['w8'], 15, 0)])
        rdtile(0)
        emit([(new('Q3'), R['Q2'], R['Q1'], 8, 0), (new('Q6'), R['Q4'], R['Q2'], 12, 0), (R['w4'], N, N, 0, 0), (R['w6'], N, N, 2, 0)])
        emit([(new('Q7'), R['Q4'], R['Q3'], 14, 0), (sc[1], R['w4'], R['w1'], 1, 0), (sc[2], R['w4'], R['w3'], 3, 0), (sc[3], R['Q1'], R['w8'], 4, 0)])
        emit([(sc[0], R['Q3'], R['w4'], 9, 0), (sc[1], R['Q3'], R['w8'], 10, 0), (sc[2], R['Q6'], R['w8'], 13, 0), (sc[3], R['Q7'], R['w8'], 15, 0)])
        rdtile(1)
        emit([(U[0], kp + 4, kp + 2, 0, 1), (new('w16'), R['w8'], R['w8'], N, 0)])
        emit([(U[1], U[0], R['w8'], 1, 1), (new('w32'), R['w16'], R['w16'], N, 0), (U[2], U[0], R['w16'], 2, 1)])
        emit([(U[3], U[1], R['w16'], 3, 1), (U[0], U[0], R['w32'], 4, 1)])
        emit([(U[i], U[i], R['w32'], 4 + i, 1) for i in range(1, 4)])
        for b in range(2, 4): emit([(U[i], U[i], R['w32'], 4 * b + i, 1) for i in range(4)])
        rdtile(2)
        d0 = V.get(16, 4)
        mf = 'v_mfma_f32_16x16x32_bf16 %s, %s, %s, %s'
        def mm(h, ks):
            for tau in range(2):
                r = d0 + 8 * h + 4 * tau
                a(mf % (vr(r, 4), vr(fr + 16 * tau + 4 * ks, 4), vr(fr + 32 + 16 * h + 4 * ks, 4), vr(r, 4) if ks else '0'))
        for b in range(4):
            emit([(U[i], U[i], R['w32'], 4 * b + i, 1) for i in range(4)])
            if b == 1: a.wait(lg=('kt', 2))
            if b >= 1: mm(0, b - 1)
        rdtile(3)
        mm(0, 3)
        a('v_add_u32 v%d, s%d, v%d' % (wa, sT4, vL16))
        a.wait(lg=('kt', 3))
        for ks in range(4): mm(1, ks)
        for k in range(4): a('ds_write_b128 v%d, %s offset:%d' % (wa, vr(d0 + 4 * k, 4), 1024 * k), tag='kd')
        for r in R.values(): V.put(r, 2)
        for r in tmp: V.put(r, 2)
        for r in pk: V.put(r)
        V.put(wa); V.put(ra); V.put(kp, 6); V.put(fr, 64); V.put(d0, 16); V.put(t, 4)

    def kgen2(self, V):
        a = self.a; kq = self.kq
        t = V.get(4, 2); ka = V.get(); d0 = V.get(16, 4); q = V.get(32, 4)
        a('s_lshr_b32 s%d, s%d, 1\ns_and_b32 s%d, s%d, 1\ns_mul_i32 s%d, s%d, 9216\ns_lshl_b32 s%d, s%d, 11\ns_add_u32 s%d, s%d, s%d\ns_add_u32 s%d, s%d, %d\nv_add_u32 v%d, s%d, v%d' %
          (sT2, sW, sT3, sW, sT0, sT2, sT1, sT3, sT0, sT0, sT1, sT0, sT0, L_BN, t, sT0, vL16))
        for k in range(4): a('ds_read_b128 %s, v%d offset:%d' % (vr(d0 + 4 * k, 4), t, 4608 * (k >> 1) + 1024 * (k & 1)), tag='kd2')
        a('s_mul_i32 s%d, s%d, 4608\ns_lshl_b32 s%d, s%d, 8\ns_add_u32 s%d, s%d, s%d\ns_add_u32 s%d, s%d, %d' % (sT1, sT2, sT0, sT3, sT0, sT0, sT1, sT0, sT0, L_KX))
        a('v_mov_b32 v%d, 0x100\nv_lshlrev_b32 v%d, v%d, v%d\nv_and_b32 v%d, 0xe00, v%d' % (t + 1, t + 1, vG, t + 1, t + 1, t + 1))
        a('v_lshl_add_u32 v%d, v%d, 4, v%d\nv_add_u32 v%d, s%d, v%d' % (t + 1, vL15, t + 1, ka, sT0, t + 1))
        a('v_mov_b32 v%d, 0\nv_lshl_add_u32 v%d, v%d, 2, s%d\nds_write_b32 v%d, v%d' % (t + 1, t + 2, vLane, sT0, t + 2, t + 1), tag='z')
        a('v_and_b32 v%d, 0x7f, v0\nv_cmp_eq_u32 vcc, 0, v%d\nv_cndmask_b32 v%d, 0, v%d, vcc' % (t + 3, t + 3, t + 3, kq + 1))
        a('v_and_b32 v%d, 1, v0\nv_cmp_eq_u32 vcc, 0, v%d' % (t + 1, t + 1))
        a.wait(lg='kd2')
        for k in range(4): a('v_pk_add_f32 %s, %s, %s' % (vr(d0 + 2 * k, 2), vr(d0 + 2 * k, 2), vr(d0 + 8 + 2 * k, 2)))
        a('v_add_f32 v%d, v%d, v%d' % (d0, d0, t + 3))
        cv = lambda d, x, y: a('v_cvt_pk_bf16_f32 v%d, v%d, v%d' % (d, x, y))
        T0, T1 = d0, d0 + 4
        cv(q, T0, T0 + 1); cv(q + 1, T0 + 2, T0 + 3); cv(q + 2, T1, T1 + 1); cv(q + 3, T1 + 2, T1 + 3)
        cv(q + 4, T0, T0); cv(q + 5, T0 + 1, T0 + 2); cv(q + 6, T0 + 2, T0 + 2); cv(q + 7, T0 + 3, T1)
        for i, T in enumerate((T0, T1)):
            b = q + 8 + 4 * i
            cv(b, T, T); cv(b + 1, T, T + 1); cv(b + 2, T + 1, T + 1); cv(b + 3, T + 2, T + 2)
        for i in range(4):
            b = q + 16 + 4 * i; v0 = d0 + 2 * i
            a('v_cndmask_b32 v%d, v%d, v%d, vcc' % (t, v0 + 1, v0))
            cv(b, v0, v0); cv(b + 1, v0, v0); cv(b + 2, t, v0 + 1); cv(b + 3, v0 + 1, v0 + 1)
        a('s_mov_b64 exec, 0xffff\nds_write_b128 v%d, %s offset:512' % (ka, vr(q, 4)), tag='kx')
        a('s_lshl_b64 exec, exec, 16\nds_write_b128 v%d, %s offset:512' % (ka, vr(q + 4, 4)), tag='kx')
        a('s_lshl_b64 exec, exec, 16')
        for i in range(2): a('ds_write_b128 v%d, %s offset:%d' % (ka, vr(q + 8 + 4 * i, 4), 512 + 512 * i), tag='kx')
        a('s_lshl_b64 exec, exec, 16')
        for i in range(4): a('ds_write_b128 v%d, %s offset:%d' % (ka, vr(q + 16 + 4 * i, 4), 512 + 512 * i), tag='kx')
        a('s_mov_b64 exec, -1')
        a.wait(lg='kx')
        V.put(q, 32); V.put(d0, 16); V.put(ka); V.put(t, 4); V.put(kq, 2)

    XL = 228
    def xt_load(self, V):
        a = self.a; xl = self.XL
        t0, t1 = V.get(), V.get()
        a('v_lshrrev_b32 v%d, 2, v0\nv_lshlrev_b32 v%d, 14, v%d\nv_lshl_add_u32 v%d, v%d, 4, v%d' % (t0, t0, t0, t0, vC, t0))
        a('v_cmp_eq_u32 vcc, 0, v%d\nv_mov_b32 v%d, %d\nv_cndmask_b32 v%d, -16, v%d, vcc\nv_add_u32 v%d, v%d, v%d' % (vC, t1, -16384 + 48, t1, t1, t1, t0, t1))
        a('s_lshl_b32 s%d, s%d, 6\ns_add_u32 s%d, s%d, 0x%x' % (sT0, sPAIR, sT0, sT0, WS_XT))
        for i in range(2):
            a('buffer_load_dwordx4 %s, v%d, %s, s%d offen%s' % (vr(xl + 8 * i + 4, 4), t0, sr(SWS, 4), sT0, self.sc), tag='xt')
            a('buffer_load_dwordx4 %s, v%d, %s, s%d offen%s' % (vr(xl + 8 * i, 4), t1, sr(SWS, 4), sT0, self.sc), tag='xt')
            if i == 0: a('v_add_u32 v%d, 0x100000, v%d\nv_add_u32 v%d, 0x100000, v%d' % (t0, t0, t1, t1))
        V.put(t0); V.put(t1)

    def xcopies(self, V):
        a = self.a; xl = self.XL
        wa = V.get(); q = 124; z = V.get(2)
        a('v_lshlrev_b32 v%d, 3, v0\nv_add_u32 v%d, %d, v%d' % (wa, wa, L_XC + 32, wa))
        a('v_lshrrev_b32 v%d, 3, v%d\nv_mul_u32_u24 v%d, 4160, v%d\nv_and_b32 v%d, 7, v%d\nv_lshl_add_u32 v%d, v%d, 2, v%d\nv_add_u32 v%d, %d, v%d\nv_mov_b32 v%d, 0' %
          (z, vLane, z, z, z + 1, vLane, z, z + 1, z, z, L_XC, z, z + 1))
        a('ds_write_b32 v%d, v%d' % (z, z + 1), tag='xc')
        a.wait(vm='xt')
        al = lambda d, hi, lo: a('v_alignbit_b32 v%d, v%d, v%d, 16' % (d, hi, lo))
        for i in range(2):
            for ch in range(2):
                q0, q1, c0, c1 = xl + 8 * i + 2 * ch, xl + 8 * i + 2 * ch + 1, xl + 8 * i + 4 + 2 * ch, xl + 8 * i + 5 + 2 * ch
                o = ch * 16640 + 2048 * i; b = q + 6 * (2 * i + ch)
                a('ds_write_b64 v%d, %s offset:%d' % (wa, vr(c0, 2), o), tag='xc')
                al(b, c0, q1); al(b + 1, c1, c0); al(b + 4, q1, q0); al(b + 5, c0, q1)
                a('v_mov_b32 v%d, v%d\nv_mov_b32 v%d, v%d' % (b + 2, q1, b + 3, c0))
                for k in range(3): a('ds_write_b64 v%d, %s offset:%d' % (wa, vr(b + 2 * k, 2), o + 4160 * (k + 1)), tag='xc')
        V.put(wa); V.put(z, 2)

    def conv(self, V, hook=lambda n: None):
        a = self.a
        aG, aF, t = V.get(), V.get(), V.get()
        a('s_lshr_b32 s%d, s%d, 1\ns_mul_i32 s%d, s%d, 16640\ns_and_b32 s%d, s%d, 1\ns_lshl_b32 s%d, s%d, 8\ns_add_u32 s%d, s%d, s%d\ns_add_u32 s%d, s%d, %d' %
          (sT2, sW, sT0, sT2, sT3, sW, sT1, sT3, sT0, sT0, sT1, sT0, sT0, L_XC + 56))
        a('v_mul_u32_u24 v%d, 4160, v%d\nv_lshl_add_u32 v%d, v%d, 3, v%d\nv_lshlrev_b32 v%d, 4, v%d\nv_sub_u32 v%d, v%d, v%d\nv_add_u32 v%d, s%d, v%d' %
          (aG, vR, aG, vC, aG, t, vG, aG, aG, t, aG, sT0, aG))
        a('s_mul_i32 s%d, s%d, 4608\ns_sub_u32 s%d, s%d, s%d\ns_add_u32 s%d, s%d, %d' % (sT0, sT2, sT0, sT0, sT1, sT0, sT0, L_KX + 480 - 192))
        a('v_lshl_add_u32 v%d, v%d, 5, v%d\nv_add_u32 v%d, s%d, v%d' % (aF, vL15, t, aF, sT0, aF))
        a.wait(lg='all'); a('s_barrier'); self.stamp()
        NBUF = 12
        acc = 224; F = 124; Gm = 172
        sl = lambda i, k: 4 * ((8 * i + k) % NBUF)
        def rd(i, k):
            return [lambda: a('ds_read_b128 %s, v%d offset:%d' % (vr(F + sl(i, k), 4), aF, 512 * k + 64 * (3 - i)), tag=('cv', i, k)),
                    lambda: a('ds_read_b64_tr_b16 %s, v%d offset:%d' % (vr(Gm + sl(i, k), 2), aG, 512 * k + 64 * i + 8), tag=('cv', i, k)),
                    lambda: a('ds_read_b64_tr_b16 %s, v%d offset:%d' % (vr(Gm + sl(i, k) + 2, 2), aG, 512 * k + 64 * i), tag=('cv', i, k))]
        seq = [(i, k) for i in range(4) for k in range(8)]
        AH = 4
        for x in seq[:AH]:
            for f in rd(*x): f()
        started = set(); pend = []
        for n, (i, k) in enumerate(seq):
            while pend: pend.pop(0)()
            a.wait(lg=('cv', i, k))
            if n + AH < len(seq): pend = rd(*seq[n + AH])
            pairs = [(u, v) for u in range(k + 1) for v in range(k + 1) if max(u, v) == k and u + v <= 7]
            for m, (u, v) in enumerate(pairs):
                jt = u + v
                a('v_mfma_f32_16x16x32_bf16 %s, %s, %s, %s' % (ar(acc + 4 * jt, 4), vr(Gm + sl(i, v), 4), vr(F + sl(i, u), 4), ar(acc + 4 * jt, 4) if jt in started else '0'))
                started.add(jt)
                if pend: pend.pop(0)()
            hook(n)
        self.stamp()
        a('s_lshl_b32 s%d, s%d, 13\ns_add_u32 s%d, s%d, %d' % (sT0, sW, sT0, sT0, L_RED))
        a('v_bfe_u32 v%d, v0, 1, 2\nv_xor_b32 v%d, v%d, v%d\nv_lshlrev_b32 v%d, 4, v%d\nv_lshl_add_u32 v%d, v%d, 6, v%d\nv_add_u32 v%d, s%d, v%d' % (aF, aF, aF, vG, aF, aF, aF, vL15, aF, aF, sT0, aF))
        for j in range(8): a('ds_write_b128 v%d, %s offset:%d' % (aF, ar(acc + 4 * j, 4), 1024 * j), tag='cr')
        a('s_and_b32 s%d, s%d, 2\ns_lshl_b32 s%d, s%d, 13\ns_and_b32 s%d, s%d, 1\ns_lshl_b32 s%d, s%d, 12\ns_add_u32 s%d, s%d, s%d\ns_add_u32 s%d, s%d, %d' % (sT0, sW, sT0, sT0, sT1, sW, sT1, sT1, sT0, sT0, sT1, sT0, sT0, L_RED))
        a('v_lshlrev_b32 v%d, 1, v%d\nv_xor_b32 v%d, v%d, v%d\nv_lshlrev_b32 v%d, 4, v%d\nv_add_u32 v%d, s%d, v%d\nv_xor_b32 v%d, 16, v%d' % (aG, vLane, aG, aG, vR, aG, aG, aG, sT0, aG, t, aG))
        a('s_lshl_b32 s%d, s%d, 13\ns_lshl_b32 s%d, s%d, 11\ns_add_u32 s%d, s%d, s%d\ns_add_u32 s%d, s%d, 0x%x' % (sT0, sPAIR, sT1, sW, sT0, sT0, sT1, sT0, sT0, WS_YT))
        a.wait(lg='all'); a('s_barrier')
        for j in range(2):
            for src in range(2):
                for e in range(2): a('ds_read_b128 %s, v%d offset:%d' % (vr(Gm + 16 * j + 8 * src + 4 * e, 4), (aG, t)[e], 2048 * j + 8192 * src), tag=('cr', j))
        for j in range(2):
            a.wait(lg=('cr', j))
            x = Gm + 16 * j
            for k in range(4): a('v_pk_add_f32 %s, %s, %s' % (vr(x + 2 * k, 2), vr(x + 2 * k, 2), vr(x + 8 + 2 * k, 2)))
            for k in range(4): a('v_cvt_pk_bf16_f32 v%d, v%d, v%d' % (self.XL + 4 * j + k, x + 2 * k, x + 2 * k + 1))
            a('buffer_store_dwordx4 %s, v%d, %s, s%d offen offset:%d%s' % (vr(self.XL + 4 * j, 4), vL16, sr(SWS, 4), sT0, 1024 * j, self.sc), tag='ypub')
        V.put(aG); V.put(aF); V.put(t)

    W2V = 248
    def w2_start(self):
        a = self.a; v = self.W2V; t = v + 4
        a('v_lshrrev_b32 v%d, 3, v%d\nv_lshlrev_b32 v%d, 10, v%d\nv_and_b32 v%d, 1, v%d\nv_lshlrev_b32 v%d, 2, v%d' % (v, vLane, v, v, t, vG, t, t))
        a('v_and_b32 v%d, 7, v%d\nv_xor_b32 v%d, v%d, v%d\nv_lshl_add_u32 v%d, v%d, 4, v%d' % (t + 1, vLane, t, t, t + 1, v, t, v))
        a('s_lshl_b32 s%d, s%d, 7\nv_add_u32 v%d, s%d, v%d' % (sC, sDB, v, sC, v))
        for i in range(1, 4): a('v_add_u32 v%d, %d, v%d' % (v + i, 7168 * i, v))
        a('s_mul_i32 s%d, s%d, 12288\ns_add_u32 s%d, s%d, %d\ns_mul_i32 s%d, s%d, %d' % (sC, sW, sC, sC, L_W2, sD, sW, 14 * 32768))
        a('v_lshl_add_u32 v%d, v%d, 2, v%d\nv_lshlrev_b32 v%d, 7, v%d\nv_lshl_add_u32 v%d, v%d, 4, v%d\nv_add_u32 v%d, s%d, v%d' % (t, vG, vR, t, t, t, vC, t, t, sC, t))
        a('v_and_b32 v%d, 2, v%d\nv_lshl_add_u32 v%d, v%d, 5, v%d\nv_xor_b32 v%d, 64, v%d' % (t + 1, vR, t, t + 1, t, t + 1, t))
        self.w2_dma = 0; self.w2_rd = 0
        for _ in range(3): self.w2_issue()
    def w2_issue(self):
        a = self.a; q = self.w2_dma; v = self.W2V
        a('s_add_u32 m0, s%d, %d' % (sC, 4096 * (q % 3)))
        for i in range(4): a('buffer_load_dwordx4 v%d, %s, s%d offen offset:%d lds' % (v + i, sr(SW2, 4), sD, 1024 * i), tag=('w2', q))
        a('s_add_u32 s%d, s%d, 32768' % (sD, sD))
        self.w2_dma += 1
    def w2_step(self):
        a = self.a; t = self.W2V + 4
        if self.w2_dma < 14 and self.w2_dma < self.w2_rd + 3:
            a.wait(lg=('w2r', self.w2_dma - 3)); self.w2_issue()
        if self.w2_rd < 14:
            q = self.w2_rd
            a.wait(vm=('w2', q))
            for j in range(4):
                for h in range(2):
                    a('ds_read_b64_tr_b16 %s, v%d offset:%d' % (ar(16 * q + 4 * j + 2 * h, 2), t + (j >> 1), 4096 * (q % 3) + 2048 * h + 8 * (j & 1)), tag=('w2r', q))
            self.w2_rd += 1

    def g2_pre(self, V):
        a = self.a
        self.xb = 28; self.vo = V.get(); t = V.get(); self.xraw = 108
        a('s_lshl_b32 s%d, s%d, 7\nv_lshl_add_u32 v%d, v%d, 4, s%d\nv_lshl_add_u32 v%d, v%d, 10, v%d' % (sT0, sDB, t, vG, sT0, self.vo, vL15, t))
        a('s_lshl_b32 s%d, s%d, 16\ns_lshl_b32 s%d, s%d, 14\ns_add_u32 s%d, s%d, s%d\nv_add_u32 v%d, s%d, v%d' % (sT0, sRT, sT1, sW, sT0, sT0, sT1, self.vo, sT0, self.vo))
        for J in range(2):
            a('buffer_load_dwordx4 %s, v%d, %s, 0 offen offset:%d' % (vr(self.xraw + 4 * J, 4), self.vo, sr(SX, 4), 64 * J), tag='xb')
            a('global_load_dwordx4 %s, v%d, %s offset:%d' % (vr(self.xraw + 8 + 4 * J, 4), t, sr(P(13), 2), 64 * J), tag='xb')
        V.put(t)
    def g2_pre2(self, V):
        a = self.a; t = V.get(2)
        a.wait(vm='xb')
        for k in range(8):
            x, b, o = self.xraw + k, self.xraw + 8 + k, self.xb + 2 * k
            a('v_lshlrev_b32 v%d, 16, v%d\nv_and_b32 v%d, 0xffff0000, v%d\nv_lshlrev_b32 v%d, 16, v%d\nv_and_b32 v%d, 0xffff0000, v%d' % (o, x, o + 1, x, t, b, t + 1, b))
            a('v_pk_add_f32 %s, %s, %s' % (vr(o, 2), vr(o, 2), vr(t, 2)))
        V.put(t, 2)
    def h_setup(self, V, NH):
        a = self.a
        self.NH = NH; self.hb = 44; self.hq = 0
        for i, s in enumerate((sA, sB, sE, sF)):
            a('s_xor_b32 s%d, s%d, %d\ns_lshl_b32 s%d, s%d, 2\ns_add_u32 s%d, s%d, s%d\ns_mul_i32 s%d, s%d, 57344\ns_mul_i32 s%d, s%d, 14336\ns_add_u32 s%d, s%d, s%d' %
              (sT0, sW, i, sT1, sRT, sT0, sT0, sT1, sT0, sT0, sT1, sW, s, sT0, sT1))
        self.hv = V.get(4)
        for i in range(4): a('v_add_u32 v%d, %d, v%d' % (self.hv + i, 4096 * i, vL16))
    def h_load(self, q, tt):
        self.a('buffer_load_dwordx4 %s, v%d, %s, s%d offen offset:%d%s' % (vr(self.hb + 16 * (q % self.NH) + 4 * tt, 4), self.hv + q // 4, sr(SWS, 4), (sA, sB, sE, sF)[tt], 1024 * (q % 4), self.sc), tag=('h', q, tt))
    def gemm2(self, V, hook=lambda q: None, ypos=9):
        a = self.a; NH = self.NH
        acc = [[self.xb + 4 * j] + [172 + 16 * k + 4 * j for k in range(3)] for j in range(4)]
        yv, t = V.get(), V.get(); yf = 220; idn = V.get(2)
        a.wait(lg='all')
        for q in range(14):
            for tt in range(4):
                a.wait(vm=('h', q, tt))
                for j in range(4):
                    c = vr(acc[j][tt], 4)
                    a('v_mfma_f32_16x16x32_bf16 %s, %s, %s, %s' % (c, ar(16 * q + 4 * j, 4), vr(self.hb + 16 * (q % NH) + 4 * tt, 4), c if (q or tt == 0) else '0'))
                if q + NH < 14: self.h_load(q + NH, tt)
            hook(q)
            if q == ypos:
                a('v_lshl_add_u32 v%d, v%d, 3, v%d\nv_lshlrev_b32 v%d, 12, v%d\nv_lshl_add_u32 v%d, v%d, 3, v%d' % (yv, vR, vC, yv, yv, yv, vG, yv))
                a('s_lshl_b32 s%d, s%d, 18\ns_lshl_b32 s%d, s%d, 7\ns_add_u32 s%d, s%d, s%d\ns_lshl_b32 s%d, s%d, 5\ns_add_u32 s%d, s%d, s%d\ns_add_u32 s%d, s%d, 0x%x' %
                  (sT0, sDB, sT1, sRT, sT0, sT0, sT1, sT1, sW, sT0, sT0, sT1, sT0, sT0, WS_YT))
                for j in range(4):
                    a('buffer_load_dwordx2 %s, v%d, %s, s%d offen%s' % (vr(yf + 2 * j, 2), yv, sr(SWS, 4), sT0, self.sc), tag='y')
                    if j < 3: a('s_add_u32 s%d, s%d, %d' % (sT0, sT0, (4 if j != 1 else 28) * 4096))
                a('v_lshlrev_b32 v%d, 2, v%d\nv_sub_u32 v%d, v%d, v%d\nv_mov_b32 v%d, 0x3f80\nv_mov_b32 v%d, 0' % (t, vG, t, vL15, t, idn, idn + 1))
                a('v_cmp_gt_u32 vcc, 4, v%d\nv_lshlrev_b32 v%d, 4, v%d\nv_cndmask_b32 v%d, 0, v%d, vcc\nv_lshlrev_b64 %s, v%d, %s' % (t, t, t, idn, idn, vr(idn, 2), t, vr(idn, 2)))
        self.stamp()
        wa = V.get(3)
        for k in range(1, 4):
            a('s_xor_b32 s%d, s%d, %d\ns_mul_i32 s%d, s%d, 12288\ns_add_u32 s%d, s%d, %d\nv_add_u32 v%d, s%d, v%d' % (sT0, sW, k, sT0, sT0, sT0, sT0, L_RED2 + 4096 * (k - 1), wa + k - 1, sT0, vL16))
        for k in range(1, 4):
            for j in range(4): a('ds_write_b128 v%d, %s offset:%d' % (wa + k - 1, vr(acc[j][k], 4), 1024 * j), tag='rw')
        a.wait(vm='y')
        for j in range(4): a('v_mfma_f32_16x16x16_bf16 %s, %s, %s, %s' % (vr(acc[j][0], 4), vr(yf + 2 * j, 2), vr(idn, 2), vr(acc[j][0], 4)))
        a('s_mul_i32 s%d, s%d, 12288\ns_add_u32 s%d, s%d, %d\nv_add_u32 v%d, s%d, v%d' % (sT0, sW, sT0, sT0, L_RED2, t, sT0, vL16))
        a.wait(lg='all'); a('s_barrier')
        rb = self.hb
        for j in range(4):
            for k in range(3): a('ds_read_b128 %s, v%d offset:%d' % (vr(rb + 12 * j + 4 * k, 4), t, 4096 * k + 1024 * j), tag=('rr', j))
        ob = rb + 48
        for j in range(4):
            a.wait(lg=('rr', j))
            c = acc[j][0]; r = rb + 12 * j
            for hh in (0, 2):
                a('v_pk_add_f32 %s, %s, %s' % (vr(c + hh, 2), vr(c + hh, 2), vr(r + hh, 2)))
                a('v_pk_add_f32 %s, %s, %s' % (vr(r + 4 + hh, 2), vr(r + 4 + hh, 2), vr(r + 8 + hh, 2)))
            for hh in (0, 2): a('v_pk_add_f32 %s, %s, %s' % (vr(c + hh, 2), vr(c + hh, 2), vr(r + 4 + hh, 2)))
            for hh in (0, 2): a('v_cvt_pk_bf16_f32 v%d, v%d, v%d' % (ob + 2 * j + hh // 2, c + hh, c + hh + 1))
            if j & 1: a('buffer_store_dwordx4 %s, v%d, %s, 0 offen offset:%d' % (vr(ob + 4 * (j >> 1), 4), self.vo, sr(SOUT, 4), 64 * (j >> 1)))

    def build_split(self):
        a = self.a
        names = ['p0_kernel', 'p1_kernel', 'p2_kernel', 'p3_kernel']
        self.header(names[0]); a('s_cmp_lt_u32 s%d, 28\ns_cbranch_scc1 %s' % (sJ, self.endl)); self.helper(Alloc(VBASE, 228)); self.write_stamps(0); self.footer(names[0])
        self.header(names[1]); a('s_cmp_ge_u32 s%d, 28\ns_cbranch_scc1 %s' % (sJ, self.endl)); self.gemm1(Alloc(VBASE, 228)); self.write_stamps(1); self.footer(names[1])
        self.header(names[2]); V = Alloc(VBASE, 228)
        self.kgen_load(V); self.xt_load(V); self.kgen(V); self.stamp(); a.wait(lg='all'); a('s_barrier'); self.kgen2(V); self.stamp(); V = Alloc(VBASE, 28); self.xcopies(V)
        self.conv(V); self.stamp(); self.write_stamps(2); self.footer(names[2])
        self.header(names[3]); V = Alloc(VBASE, 28)
        self.g2_pre(V); self.w2_start(); self.h_setup(V, 8); self.g2_pre2(V)
        for q in range(8):
            for tt in range(4): self.h_load(q, tt)
        while self.w2_rd < 14: self.w2_step()
        self.stamp()
        self.gemm2(V); self.stamp(); self.write_stamps(3); self.footer(names[3])
        return names
    def build_fused(self):
        a = self.a; cfg = self.cfg
        name = NAME + '_kernel'
        self.header(name)
        V = Alloc(VBASE, 228)
        self.kgen_load(V)
        hl, join = a.newlabel('HELPER'), a.newlabel('JOIN')
        a('s_cmp_ge_u32 s%d, 28\ns_cbranch_scc1 %s' % (sJ, hl))
        st0 = (list(a.vm), list(a.lg), list(a.hist), self.nst, list(V.free))
        self.gemm1(V)
        a.label(join)
        st1 = (list(a.vm), list(a.lg), list(a.hist), self.nst)
        nst_join = self.nst
        V = Alloc(VBASE, 28)
        self.g2_pre(V)
        self.xcopies(V)
        self.h_setup(V, 8)
        hp = V.get(2)
        HF, HP, HC = cfg.get('hflag', 3), cfg.get('hpoll', 14), cfg.get('hchk', 18)
        early = [(q, tt) for q in range(5) for tt in range(4)]
        def hook(n):
            if n == HF:
                a.wait(vm='pub'); self.flag(SWS, sRB, V); self.stamp(4)
            if n == HF + 1: self.g2_pre2(V)
            if n % 2 == 1 and n >= HF: self.w2_step()
            if n == HP:
                a('s_lshl_b32 s%d, s%d, 7\ns_mul_i32 s%d, s%d, 28\ns_add_u32 s%d, s%d, s%d\ns_add_u32 s%d, s%d, 0x%x' % (sCB, sRT, sT0, sW, sCB, sCB, sT0, sCB, sCB, FL_H))
                a('v_min_u32 v%d, 6, v%d\nv_lshlrev_b32 v%d, 2, v%d' % (hp, vLane, hp, hp))
                a('buffer_load_dword v%d, v%d, %s, s%d offen sc1' % (hp + 1, hp, sr(SWS, 4), sCB), tag='hp')
            if n == HC:
                self.stamp(4); self.poll(hp, SWS, 's%d' % sCB, hp + 1, first='hp'); self.stamp(4)
            if n >= HC:
                for _ in range(2):
                    if early: self.h_load(*early.pop(0))
        self.conv(V, hook)
        while early: self.h_load(*early.pop(0))
        for q in range(5, 8):
            for tt in range(4): self.h_load(q, tt)
        while self.w2_rd < 14: self.w2_step()
        self.stamp()
        YF, YP, YC = cfg.get('yflag', 1), cfg.get('ypoll', 8), cfg.get('ychk', 10)
        def hook2(q):
            if q == YF:
                a('s_lshl_b32 s%d, s%d, 9\ns_and_b32 s%d, s%d, 1\ns_lshl_b32 s%d, s%d, 8\ns_add_u32 s%d, s%d, s%d' % (sT0, sXC, sT1, sW, sT1, sT1, sT0, sT0, sT1))
                a('s_lshl_b32 s%d, s%d, 3\ns_and_b32 s%d, s%d, 2\ns_lshl_b32 s%d, s%d, 1\ns_add_u32 s%d, s%d, s%d\ns_add_u32 s%d, s%d, s%d\ns_add_u32 s%d, s%d, 0x%x' %
                  (sT1, sJ, sT2, sW, sT2, sT2, sT0, sT0, sT1, sT0, sT0, sT2, sT0, sT0, FL_Y))
                a.wait(vm='ypub'); self.flag(SWS, sT0, V); self.stamp(4)
            if q == YP:
                a('s_lshl_b32 s%d, s%d, 9\ns_lshr_b32 s%d, s%d, 4\ns_lshl_b32 s%d, s%d, 8\ns_add_u32 s%d, s%d, s%d\ns_add_u32 s%d, s%d, 0x%x' % (sCB, sDB, sT0, sRT, sT0, sT0, sCB, sCB, sT0, sCB, sCB, FL_Y))
                a('v_lshlrev_b32 v%d, 2, v%d' % (hp, vLane))
                a('buffer_load_dword v%d, v%d, %s, s%d offen sc1' % (hp + 1, hp, sr(SWS, 4), sCB), tag='yp')
            if q == YC:
                self.stamp(4); self.poll(hp, SWS, 's%d' % sCB, hp + 1, first='yp'); self.stamp(4)
        self.gemm2(V, hook2, YC)
        self.stamp(); self.write_stamps(0)
        a('s_endpgm')
        a.label(hl)
        a.vm, a.lg, a.hist, self.nst = st0[0], st0[1], st0[2], st0[3]
        V = Alloc(VBASE, 228); V.free = st0[4]
        self.helper(V)
        a.wait(vm='all', lg='all'); a('s_barrier')
        skip = a.newlabel('NOFLAG')
        a('s_lshl_b32 s%d, s%d, 2\ns_cmp_lg_u32 s%d, 0\ns_cbranch_scc1 %s' % (sT0, sRB, sW, skip))
        self.flag(SDBG, sT0, V)
        a.label(skip); a.vm = []
        self.w2_start()
        self.kgen(V)
        self.xpoll_issue(V)
        a.wait(lg='all'); a('s_barrier')
        self.kgen2(V)
        self.xpoll_check(V)
        self.xt_load(V)
        a('s_mov_b32 s%d, 0x%x' % (sRB, WS_FL + 8192))
        while self.nst < nst_join: self.stamp(7)
        a.drain()
        a('s_branch %s' % join)
        self.footer(name)
        return [name]
    def finish(self, names):
        hdr = ''
        if len(names) == 1:
            hdr += '; @launch grid=(256,1,1) block=(256,1,1) lds=%d\n' % LDS_BYTES
        else:
            for n in names: hdr += '; @launch kernel=%s grid=(256,1,1) block=(256,1,1) lds=%d\n' % (n, LDS_BYTES)
        body = '.amdgcn_target "amdgcn-amd-amdhsa--gfx950"\n.text\n' + self.a.text()
        if self.cfg.get('align', True): body = align8(body)
        return hdr + body + '\n.section .rodata,"a"\n' + ''.join(self.kd(n) for n in dict.fromkeys(names))

if __name__ == '__main__':
    cfg = {}
    for kv in sys.argv[3:]:
        k, v = kv.split('='); cfg[k] = int(v)
    mode = sys.argv[1]
    if mode == 'fused': cfg['fused'] = 1
    g = G(cfg)
    names = g.build_split() if mode == 'split' else g.build_fused()
    open(sys.argv[2], 'w').write(g.finish(names))
```
